```python
import torch

def _softmax(x, axis=-1):
    return torch.softmax(x, dim=axis)

def _gelu(x):
    return torch.nn.functional.gelu(x, approximate='tanh')

def _silu(x):
    return torch.nn.functional.silu(x)

def _sigmoid(x):
    return torch.sigmoid(x)

def _layernorm(x, axis=-1, eps=1e-05):
    m = x.mean(dim=axis, keepdim=True)
    v = x.var(dim=axis, keepdim=True, unbiased=False)
    return (x - m) / torch.sqrt(v + eps)

def _scatter_add(tgt, idx, src, axis=0):
    return tgt.clone().index_add_(axis, idx, src)

def _segment_sum(src, seg, n):
    out = torch.zeros((n,) + src.shape[1:], dtype=src.dtype)
    return out.index_add_(0, seg, src)

def _pad(x, pw):
    flat = tuple((v for pair in reversed(pw) for v in pair))
    return torch.nn.functional.pad(x, flat)
kernel_name = 'adaLN_cond__mha_block_cached__geglu_ffn__decode'

def setup_inputs():

    _w = lambda a: (lambda t: t.to(torch.bfloat16) if t.is_floating_point() else t)(torch.as_tensor(a))

    def _A_setup():
        B, Sq, D = (4, 1, 512)
        H, Sk, Dh = (32, 4096, 128)
        return {'x': _w((lambda *s: torch.randn(*s, dtype=torch.bfloat16) * 0.1)(B, Sq, D)), 'k_cache': _w((lambda *s: torch.randn(*s, dtype=torch.bfloat16) * 0.8)(B, H, Sk, Dh)), 'v_cache': _w((lambda *s: torch.randn(*s, dtype=torch.bfloat16) * 0.8)(B, H, Sk, Dh)), 'wq': _w((lambda *s: torch.randn(*s, dtype=torch.bfloat16) * 0.8)(D, H * Dh) * D ** (-0.5)), 'wo': _w((lambda *s: torch.randn(*s, dtype=torch.bfloat16) * 0.8)(H * Dh, D) * (H * Dh) ** (-0.5))}
    _A_in = _A_setup()

    def _B_setup():
        B, S, D, F = (4, 1, 512, 1792)
        return {'x': _w((lambda *s: torch.randn(*s, dtype=torch.bfloat16) * 0.1)(B, S, D)), 'w_gate': _w((lambda *s: torch.randn(*s, dtype=torch.bfloat16) * 0.1)(D, F)), 'w_up': _w((lambda *s: torch.randn(*s, dtype=torch.bfloat16) * 0.1)(D, F)), 'w_down': _w((lambda *s: torch.randn(*s, dtype=torch.bfloat16) * 0.1)(F, D))}
    _B_in = _B_setup()
    return {'A_x': _A_in['x'], 'A_k_cache': _A_in['k_cache'], 'A_v_cache': _A_in['v_cache'], 'A_wq': _A_in['wq'], 'A_wo': _A_in['wo'], 'B_x': _B_in['x'], 'B_w_gate': _B_in['w_gate'], 'B_w_up': _B_in['w_up'], 'B_w_down': _B_in['w_down'], 'c': _w((lambda *s: torch.randn(*s, dtype=torch.bfloat16) * 0.8)(4, 512) * 8.0), 'w_mod': _w((lambda *s: torch.randn(*s, dtype=torch.bfloat16) * 0.8)(512, 6 * 512) * 512 ** (-0.5) * 8.0)}

def reference(A_x, A_k_cache, A_v_cache, A_wq, A_wo, B_x, B_w_gate, B_w_up, B_w_down, c, w_mod):

    def _A_ref(x, k_cache, v_cache, wq, wo):
        B, Sq, D = x.shape
        H, Dh = (32, 128)
        q = (lambda x, *d: x.permute(*d))((x @ wq).reshape(B, Sq, H, Dh), 0, 2, 1, 3)
        scores = torch.einsum('bhqd,bhkd->bhqk', q, k_cache) * Dh ** (-0.5)
        p = _softmax(scores, axis=-1)
        o = torch.einsum('bhqk,bhkd->bhqd', p, v_cache)
        return (lambda x, *d: x.permute(*d))(o, 0, 2, 1, 3).reshape(B, Sq, H * Dh) @ wo

    def _B_ref(x, w_gate, w_up, w_down):
        return _gelu(x @ w_gate) * (x @ w_up) @ w_down
    x = A_x
    mod = (_silu(c) @ w_mod).reshape(c.shape[0], 6, 1, -1)
    sa, ca, ga, sb, cb, gb = (mod[:, 0].clone(), mod[:, 1].clone(), mod[:, 2].clone(), mod[:, 3].clone(), mod[:, 4].clone(), mod[:, 5].clone())
    h = _layernorm(x, axis=-1) * (1 + ca) + sa
    x = x + ga * _A_ref(h, A_k_cache, A_v_cache, A_wq, A_wo)
    h = _layernorm(x, axis=-1) * (1 + cb) + sb
    x = x + gb * _B_ref(h, B_w_gate, B_w_up, B_w_down)
    return x
```

```python
import re

TRANS = ('v_exp_f32', 'v_rcp_f32', 'v_rsq_f32', 'v_sqrt_f32', 'v_log_f32', 'v_sin_f32', 'v_cos_f32')

def parse_regs(tok):
    tok = tok.strip()
    tok = re.sub(r'^-', '', tok)
    m = re.match(r'^abs\((.*)\)$', tok)
    if m: tok = m.group(1)
    m = re.match(r'^([vsa])(\d+)$', tok)
    if m: return [(m.group(1), int(m.group(2)))]
    m = re.match(r'^([vsa])\[(\d+):(\d+)\]$', tok)
    if m: return [(m.group(1), i) for i in range(int(m.group(2)), int(m.group(3)) + 1)]
    if tok == 'vcc': return [('vcc', 0)]
    if tok == 'exec': return [('exec', 0)]
    if tok == 'm0': return [('m0', 0)]
    return []

class Em:
    def __init__(self):
        self.lines = []
        self.hist = []
        self.n = 0
        self.vm = []
        self.lg = []

    def raw(self, text):
        self.lines.append(text)

    def label(self, name):
        self.lines.append(f'{name}:')
        self.flush_haz()

    def flush_haz(self):
        self.lines.append('  s_nop 7')
        self.n += 8
        self.hist = []

    def nop(self, k):
        while k > 0:
            c = min(k, 16)
            self.lines.append(f'  s_nop {c-1}')
            self.n += c
            k -= c

    def _classify(self, mn):
        base = mn.replace('_e32', '').replace('_e64', '')
        dpp = base.endswith('_dpp')
        if dpp: base = base[:-4]
        if base.startswith('v_mfma'): return 'mfma', base, dpp
        if base.startswith('v_dot'): return 'dot', base, dpp
        if base in TRANS: return 'trans', base, dpp
        if base.startswith('v_'): return 'valu', base, dpp
        if base.startswith('s_'): return 'salu', base, dpp
        if base.startswith('ds_'): return 'lds', base, dpp
        if base.startswith('global_') or base.startswith('buffer_') or base.startswith('flat_'): return 'vmem', base, dpp
        return 'other', base, dpp

    def __call__(self, text, tag=None):
        t = text.strip()
        parts = t.split(None, 1)
        mn = parts[0]
        ops_str = parts[1] if len(parts) > 1 else ''
        toks = [x.strip() for x in ops_str.split(',')]
        clean = []
        for i, tk in enumerate(toks):
            first = tk.split()[0] if tk.split() else ''
            clean.append(first)
        kind, base, dpp = self._classify(mn)
        regs = [parse_regs(x) for x in clean]
        dst, src = [], []
        if kind in ('valu', 'trans', 'dot', 'mfma'):
            if base.startswith('v_cmp'):
                dst = regs[0]; src = sum(regs[1:], [])
            elif base.startswith('v_permlane') and 'swap' in base:
                dst = regs[0] + regs[1]; src = regs[0] + regs[1]
            else:
                dst = regs[0]; src = sum(regs[1:], [])
                if base in ('v_dot2c_f32_bf16', 'v_fmac_f32', 'v_dot2c_f32_f16', 'v_dot4c_i32_i8'):
                    src = src + regs[0]
                if dpp and 'bound_ctrl' not in t:
                    src = src + regs[0]
            if base == 'v_cndmask_b32' and len(regs) == 3:
                src = src + [('vcc', 0)]
        elif kind == 'vmem':
            if 'store' in base or ('atomic' in base and ' sc0' not in t):
                src = sum(regs, [])
            else:
                dst = regs[0]; src = sum(regs[1:], [])
        elif kind == 'lds':
            if base.startswith('ds_write'):
                src = sum(regs, [])
            else:
                dst = regs[0]; src = sum(regs[1:], [])
        elif kind == 'salu':
            if regs: dst = regs[0]; src = sum(regs[1:], [])
        need = 0
        for h in reversed(self.hist):
            dist = self.n - h['pos'] - 1
            if dist > 24: break
            req = 0
            hd = set(h['dst']); cs = set(src); cd = set(dst)
            raw = hd & cs; waw = hd & cd
            if h['kind'] in ('valu', 'trans', 'dot'):
                vraw = [r for r in raw if r[0] == 'v']
                sraw = [r for r in raw if r[0] in ('s', 'vcc')]
                if vraw:
                    if dpp: req = max(req, 2)
                    if base in ('v_readlane_b32', 'v_readfirstlane_b32'): req = max(req, 1)
                    if base.startswith('v_permlane'): req = max(req, 2)
                    if kind == 'mfma': req = max(req, 2)
                    if h['kind'] == 'trans' and kind != 'trans': req = max(req, 1)
                    if h['kind'] == 'trans' and kind == 'trans': req = max(req, 1)
                if h['kind'] == 'dot' and (vraw or [r for r in waw if r[0] == 'v']):
                    same_c = (kind == 'dot' and base == h['mn'] and set(vraw) <= set(dst) and not (set(vraw) & set(sum(regs[1:], []))))
                    if not same_c: req = max(req, 3)
                if sraw:
                    if kind in ('valu', 'trans', 'dot', 'mfma'): req = max(req, 2)
                    if kind == 'vmem': req = max(req, 5)
                    if kind == 'lds': req = max(req, 2)
            if h['kind'] == 'vmem' and h.get('wide_store'):
                if kind in ('valu', 'trans', 'dot', 'mfma') and (set(h['src']) & cd): req = max(req, 2)
            if h['kind'] == 'mfma':
                passes = h['passes']
                if hd & cs or hd & cd:
                    if kind == 'mfma':
                        srcc = regs[3] if len(regs) > 3 else []
                        if set(srcc) == hd and base == h['mn'] and not (hd & set(regs[1] + regs[2])):
                            req = max(req, 0 if passes >= 4 else 2)
                        else:
                            req = max(req, {2: 5, 4: 8, 8: 12, 16: 20}[passes])
                    else:
                        req = max(req, {2: 5, 4: 8, 8: 12, 16: 20}[passes])
                if kind in ('valu', 'trans', 'dot') and (set(h.get('srcc', [])) & cd):
                    req = max(req, {2: 1, 4: 3, 8: 7, 16: 15}[passes])
            if req > dist:
                need = max(need, req - dist)
        if need > 0:
            self.nop(need)
        rec = dict(pos=self.n, kind=kind, mn=base, dst=dst, src=src)
        if kind == 'vmem' and ('store_dwordx4' in base or 'store_dwordx3' in base): rec['wide_store'] = True
        if kind == 'mfma':
            rec['passes'] = 8 if '32x32x16' in base else 4
            rec['srcc'] = regs[3] if len(regs) > 3 else []
        self.hist.append(rec)
        if len(self.hist) > 40: self.hist.pop(0)
        self.lines.append('  ' + t)
        self.n += 1
        if kind == 'vmem':
            self.vm.append(tag)
        if kind == 'lds':
            self.lg.append(tag)

    def wait_vm(self, tag):
        if tag not in self.vm: return
        i = len(self.vm) - 1 - self.vm[::-1].index(tag)
        n = len(self.vm) - 1 - i
        self.lines.append(f'  s_waitcnt vmcnt({n})'); self.n += 1
        self.vm = self.vm[i + 1:]

    def wait_vm_all(self):
        self.lines.append('  s_waitcnt vmcnt(0)'); self.n += 1
        self.vm = []

    def wait_lg(self, tag):
        if tag not in self.lg: return
        i = len(self.lg) - 1 - self.lg[::-1].index(tag)
        n = len(self.lg) - 1 - i
        self.lines.append(f'  s_waitcnt lgkmcnt({min(n,15)})'); self.n += 1
        self.lg = self.lg[i + 1:]

    def wait_lg_all(self):
        self.lines.append('  s_waitcnt lgkmcnt(0)'); self.n += 1
        self.lg = []

    def text(self):
        return '\n'.join(self.lines) + '\n'
```

```python
import os

WS_MOD = 0
WS_ATT = 0x10000
WS_Y   = 0x12000
WS_DBG = 0x20000

LOG2E = 0x3fb8aa3b
SCALE = 0x3db504f3
EPS   = 0x3727c5ac

L_PART = 0
L_ST2  = 32768
L_Q    = 36864
L_STAT = 37120
L_OLO  = 37376
L_OHI  = 37888
LDS_BYTES = 38400

def rnd(em, dst, src):
    em(f'v_cvt_pk_bf16_f32 {dst}, {src}, {src}')
    em(f'v_lshlrev_b32 {dst}, 16, {dst}')

DPPM = 'row_mask:0xf bank_mask:0xf'
def row_allreduce(em, op, v, levels=(8, 4, 2, 1)):
    for n in levels:
        em(f'{op}_dpp {v}, {v}, {v} row_ror:{n} {DPPM}')

def cross_rows(em, op, v, t):
    em(f'v_mov_b32 {t}, {v}')
    em(f'v_permlane16_swap_b32 {v}, {t}')
    em(f'{op} {v}, {v}, {t}')
    em(f'v_mov_b32 {t}, {v}')
    em(f'v_permlane32_swap_b32 {v}, {t}')
    em(f'{op} {v}, {v}, {t}')

def wave_allreduce(em, op, v, t, levels=(8, 4, 2, 1)):
    row_allreduce(em, op, v, levels)
    cross_rows(em, op, v, t)

def lds_reduce(em, nparts, ncols, vt, vsum, vaddr, vtid='v0'):
    nsub = 1024 // ncols
    per = nparts // nsub
    lc = ncols.bit_length() - 1
    em(f'v_and_b32 {vaddr}, {ncols-1}, {vtid}')
    em(f'v_lshrrev_b32 {vt}, {lc}, {vtid}')
    em(f'v_lshlrev_b32 {vaddr}, 2, {vaddr}')
    em(f'v_lshlrev_b32 {vsum}, {lc + 2 + (per.bit_length()-1)}, {vt}')
    em(f'v_add_u32 {vsum}, {vsum}, {vaddr}')
    regs = []
    return nsub, per


def ln_stats(em, xs, m, den, rden, tmp):
    em(f'v_add_f32 {m}, {xs[0]}, {xs[1]}')
    for c in range(2, 8): em(f'v_add_f32 {m}, {m}, {xs[c]}')
    wave_allreduce(em, 'v_add_f32', m, tmp)
    em(f'v_mul_f32 {m}, 0x3b000000, {m}')
    em(f'v_sub_f32 {tmp}, {xs[0]}, {m}')
    em(f'v_mul_f32 {den}, {tmp}, {tmp}')
    for c in range(1, 8):
        em(f'v_sub_f32 {tmp}, {xs[c]}, {m}')
        em(f'v_fmac_f32 {den}, {tmp}, {tmp}')
    wave_allreduce(em, 'v_add_f32', den, tmp)
    em(f'v_mul_f32 {den}, 0x3b000000, {den}')
    rnd(em, m, m)
    rnd(em, den, den)
    em(f'v_add_f32 {den}, s52, {den}')
    rnd(em, den, den)
    em(f'v_sqrt_f32 {den}, {den}')
    rnd(em, den, den)
    em(f'v_rcp_f32 {rden}, {den}')
```

```python
from emit import Em
import gen_common as G
from gen_common import *

NF = 56
F_H2 = 0
F_X1 = 4096
F_ACT = 12288
F_FLAG = 12544
F_W = 16384
F_WD = 81920
F_LDS = 114688

def gen_ffn(em, DEBUG=0):
    K = 'adaln_ffn_kernel'
    em.raw(f'.globl {K}\n.p2align 8\n.type {K},@function\n{K}:')
    em(f's_cmp_ge_u32 s2, {NF}')
    em('s_cbranch_scc1 L_ffn_end')
    em('s_load_dwordx16 s[16:31], s[0:1], 0')
    em('s_load_dwordx8 s[32:39], s[0:1], 64')
    em('s_load_dwordx4 s[40:43], s[0:1], 96')
    em('v_lshrrev_b32 v4, 6, v0')
    em('v_and_b32 v1, 63, v0')
    em('v_readfirstlane_b32 s6, v4')
    em('v_lshlrev_b32 v2, 4, v1')
    em('s_mov_b32 s50, 0x3fb8aa3b')
    em('s_mov_b32 s52, 0x3727c5ac')
    em('s_waitcnt lgkmcnt(0)')
    em('v_lshrrev_b32 v3, 2, v1')
    em('v_mul_u32_u24 v5, 3584, v3')
    em('v_and_b32 v6, 3, v1')
    em('v_lshlrev_b32 v6, 4, v6')
    em('v_add_u32 v5, v5, v6')
    em(f's_mul_i32 s7, s6, {32*3584}')
    em('s_lshl_b32 s8, s2, 6')
    em('s_add_u32 s7, s7, s8')
    em('s_add_u32 s44, s28, s7'); em('s_addc_u32 s45, s29, 0')
    em('s_add_u32 s46, s30, s7'); em('s_addc_u32 s47, s31, 0')
    em('global_load_dwordx4 v[64:67], v5, s[44:45]', tag='wg0')
    em('global_load_dwordx4 v[72:75], v5, s[46:47]', tag='wu0')
    em(f's_add_u32 s44, s44, {16*3584}'); em('s_addc_u32 s45, s45, 0')
    em(f's_add_u32 s46, s46, {16*3584}'); em('s_addc_u32 s47, s47, 0')
    em('global_load_dwordx4 v[68:71], v5, s[44:45]', tag='wg1')
    em('global_load_dwordx4 v[76:79], v5, s[46:47]', tag='wu1')
    em('s_lshl_b32 s7, s2, 15')
    em('s_lshl_b32 s8, s6, 11')
    em('s_add_u32 s7, s7, s8')
    em('s_add_u32 s48, s32, s7'); em('s_addc_u32 s49, s33, 0')
    em('global_load_dwordx4 v[80:83], v2, s[48:49]', tag='wd0')
    em('global_load_dwordx4 v[84:87], v2, s[48:49] offset:1024', tag='wd1')
    em('s_cmp_ge_u32 s6, 4')
    em('s_cbranch_scc1 L_f_skip1')
    em('s_lshl_b32 s7, s6, 10')
    em('s_add_u32 s8, s16, s7'); em('s_addc_u32 s9, s17, 0')
    em('global_load_dwordx4 v[8:11], v2, s[8:9]', tag='x')
    em('v_lshlrev_b32 v3, 5, v1')
    em('s_lshl_b32 s7, s6, 11')
    em(f's_add_u32 s7, s7, {G.WS_ATT}')
    em('s_add_u32 s8, s42, s7'); em('s_addc_u32 s9, s43, 0')
    em('global_load_dwordx4 v[12:15], v3, s[8:9]', tag='a0')
    em('global_load_dwordx4 v[16:19], v3, s[8:9] offset:16', tag='a1')
    em('s_mul_i32 s7, s6, 12288')
    em('s_add_u32 s8, s42, s7'); em('s_addc_u32 s9, s43, 0')
    em('s_add_u32 s8, s8, 4096'); em('s_addc_u32 s9, s9, 0')
    em('global_load_dwordx4 v[20:23], v3, s[8:9]', tag='ga0')
    em('global_load_dwordx4 v[24:27], v3, s[8:9] offset:16', tag='ga1')
    em('global_load_dwordx4 v[28:31], v3, s[8:9] offset:2048', tag='sb0')
    em('global_load_dwordx4 v[32:35], v3, s[8:9] offset:2064', tag='sb1')
    em('s_add_u32 s8, s8, 4096'); em('s_addc_u32 s9, s9, 0')
    em('global_load_dwordx4 v[36:39], v3, s[8:9]', tag='cb0')
    em('global_load_dwordx4 v[40:43], v3, s[8:9] offset:16', tag='cb1')
    em.wait_vm('ga1')
    for c in range(4):
        em(f'v_lshlrev_b32 v{44+2*c}, 16, v{8+c}')
        em(f'v_and_b32 v{45+2*c}, 0xffff0000, v{8+c}')
    for e in range(8):
        a = f'v{12+e}'; ga = f'v{20+e}'; x1 = f'v{44+e}'
        rnd(em, a, a)
        em(f'v_mul_f32 {a}, {ga}, {a}')
        rnd(em, a, a)
        em(f'v_add_f32 {x1}, {x1}, {a}')
        rnd(em, x1, x1)
    em('s_lshl_b32 s7, s6, 11')
    em('v_add_u32 v3, s7, v3')
    em(f'ds_write_b128 v3, v[44:47] offset:{F_X1}')
    em(f'ds_write_b128 v3, v[48:51] offset:{F_X1+16}')
    xs = [f'v{44+e}' for e in range(8)]
    ln_stats(em, xs, 'v7', 'v52', 'v53', 'v54')
    em.wait_vm('cb1')
    for e in range(8):
        x = xs[e]; sb = f'v{28+e}'; cb = f'v{36+e}'
        em(f'v_sub_f32 {x}, {x}, v7')
        rnd(em, x, x)
        em(f'v_mul_f32 v54, {x}, v53')
        em(f'v_fma_f32 v55, -v54, v52, {x}')
        em(f'v_fma_f32 v54, v55, v53, v54')
        rnd(em, x, 'v54')
        em(f'v_add_f32 {cb}, 1.0, {cb}')
        rnd(em, cb, cb)
        em(f'v_mul_f32 {x}, {x}, {cb}')
        rnd(em, x, x)
        em(f'v_add_f32 {x}, {x}, {sb}')
    for c in range(4):
        em(f'v_cvt_pk_bf16_f32 v{8+c}, v{44+2*c}, v{45+2*c}')
    em('s_lshl_b32 s7, s6, 10')
    em('v_add_u32 v3, s7, v2')
    em(f'ds_write_b128 v3, v[8:11] offset:{F_H2}')
    em.label('L_f_skip1')
    em.vm = ['wg0', 'wu0', 'wg1', 'wu1', 'wd0', 'wd1']
    em('v_lshrrev_b32 v3, 2, v1')
    em('v_lshlrev_b32 v3, 7, v3')
    em('v_and_b32 v4, 3, v1')
    em('v_lshlrev_b32 v4, 4, v4')
    em('v_add_u32 v3, v3, v4')
    em('s_lshl_b32 s7, s6, 12')
    em(f's_add_u32 s7, s7, {F_W}')
    em('v_add_u32 v3, s7, v3')
    em.wait_vm('wg0')
    em(f'ds_write_b128 v3, v[64:67] offset:0')
    em.wait_vm('wu0')
    em(f'ds_write_b128 v3, v[72:75] offset:64')
    em.wait_vm('wg1')
    em(f'ds_write_b128 v3, v[68:71] offset:2048')
    em.wait_vm('wu1')
    em(f'ds_write_b128 v3, v[76:79] offset:2112')
    em('s_lshl_b32 s7, s6, 11')
    em(f'v_add_u32 v3, s7, v2')
    em(f'v_add_u32 v3, {F_WD}, v3')
    em.wait_vm('wd0')
    em(f'ds_write_b128 v3, v[80:83]')
    em.wait_vm('wd1')
    em(f'ds_write_b128 v3, v[84:87] offset:1024')
    em.wait_vm_all()
    em.wait_lg_all()
    em('s_barrier')
    em('s_cmp_ge_u32 s6, 2')
    em('s_cbranch_scc1 L_f_skip2')
    em('v_and_b32 v3, 15, v1')
    em('v_lshlrev_b32 v4, 10, v3')
    em('v_lshrrev_b32 v5, 4, v1')
    em('v_lshlrev_b32 v6, 4, v5')
    em('v_add_u32 v4, v4, v6')
    em('v_lshlrev_b32 v6, 3, v5')
    em('v_lshrrev_b32 v7, 2, v3')
    em('v_add_u32 v6, v6, v7')
    em('v_lshlrev_b32 v6, 7, v6')
    em('v_and_b32 v7, 3, v3')
    em('v_lshlrev_b32 v7, 3, v7')
    em('v_add_u32 v6, v6, v7')
    em('s_lshl_b32 s7, s6, 5')
    em(f's_add_u32 s7, s7, {F_W}')
    em('v_add_u32 v6, s7, v6')
    for r in range(8): em(f'v_mov_b32 v{8+r}, 0')
    for r in range(8): em(f'v_mov_b32 v{24+r}, 0')
    em('s_mov_b32 s10, 0x000f000f'); em('s_mov_b32 s11, 0x000f000f')
    for ks in range(16):
        a = 8 + 4 * (ks & 1)
        bg = 32 + 8 * (ks & 1)
        em('s_mov_b64 exec, s[10:11]')
        em(f'ds_read_b128 v[{a}:{a+3}], v4 offset:{F_H2 + ks*64}', tag=f'A{ks}')
        em('s_mov_b64 exec, -1')
        em(f'ds_read_b64_tr_b16 v[{bg}:{bg+1}], v6 offset:{ks*4096}', tag=f'Bg{ks}a')
        em(f'ds_read_b64_tr_b16 v[{bg+2}:{bg+3}], v6 offset:{ks*4096 + 512}', tag=f'Bg{ks}b')
        em(f'ds_read_b64_tr_b16 v[{bg+4}:{bg+5}], v6 offset:{ks*4096 + 64}', tag=f'Bu{ks}a')
        em(f'ds_read_b64_tr_b16 v[{bg+6}:{bg+7}], v6 offset:{ks*4096 + 512 + 64}', tag=f'Bu{ks}b')
        em.wait_lg(f'Bg{ks}b')
        em(f'v_mfma_f32_16x16x32_bf16 v[24:27], v[{a}:{a+3}], v[{bg}:{bg+3}], v[24:27]')
        em.wait_lg(f'Bu{ks}b')
        em(f'v_mfma_f32_16x16x32_bf16 v[28:31], v[{a}:{a+3}], v[{bg+4}:{bg+7}], v[28:31]')
    em('s_mov_b32 s12, 0x3f4c422a')
    em('s_mov_b32 s13, 0x3d372713')
    for b in range(4):
        g = f'v{24+b}'; u = f'v{28+b}'
        rnd(em, g, g); rnd(em, u, u)
        em(f'v_mul_f32 v48, {g}, {g}')
        em(f'v_mul_f32 v48, v48, {g}')
        em(f'v_mul_f32 v48, s13, v48')
        em(f'v_add_f32 v48, {g}, v48')
        em(f'v_mul_f32 v48, s12, v48')
        em('v_add_f32 v48, v48, v48')
        em('v_mul_f32 v48, s50, v48')
        em('v_exp_f32 v48, v48')
        em('v_add_f32 v48, 1.0, v48')
        em('v_rcp_f32 v48, v48')
        em('v_add_f32 v48, v48, v48')
        em('v_sub_f32 v48, 1.0, v48')
        em('v_add_f32 v48, 1.0, v48')
        em(f'v_mul_f32 v49, 0.5, {g}')
        em('v_mul_f32 v48, v49, v48')
        rnd(em, 'v48', 'v48')
        em(f'v_mul_f32 v48, v48, {u}')
        em(f'v_cvt_pk_bf16_f32 v{50+b}, v48, 0')
    em('v_lshlrev_b32 v48, 1, v3')
    em('s_lshl_b32 s7, s6, 5')
    em('v_add_u32 v48, s7, v48')
    em('s_mov_b64 exec, 0xffff')
    for b in range(4):
        em(f'ds_write_b16 v48, v{50+b} offset:{F_ACT + 64*b}')
    em('s_mov_b64 exec, -1')
    em.label('L_f_skip2')
    em.lg = []
    em('s_waitcnt lgkmcnt(0)')
    em('s_barrier')
    if DEBUG:
        pass
    em('v_and_b32 v3, 15, v1')
    em('v_lshrrev_b32 v5, 4, v1')
    em('v_lshlrev_b32 v4, 6, v3')
    em('v_lshlrev_b32 v6, 4, v5')
    em('v_add_u32 v4, v4, v6')
    em('v_lshlrev_b32 v6, 3, v5')
    em('v_lshrrev_b32 v7, 2, v3')
    em('v_add_u32 v6, v6, v7')
    em('v_lshlrev_b32 v6, 10, v6')
    em('v_and_b32 v7, 3, v3')
    em('v_lshlrev_b32 v7, 3, v7')
    em('v_add_u32 v6, v6, v7')
    em('s_lshl_b32 s7, s6, 6')
    em(f's_add_u32 s7, s7, {F_WD}')
    em('v_add_u32 v6, s7, v6')
    for r in range(4): em(f'v_mov_b32 v{8+r}, 0')
    for r in range(8): em(f'v_mov_b32 v{24+r}, 0')
    em('s_mov_b64 exec, s[10:11]') if False else None
    em('s_mov_b32 s10, 0x000f000f'); em('s_mov_b32 s11, 0x000f000f')
    em('s_mov_b64 exec, s[10:11]')
    em(f'ds_read_b128 v[8:11], v4 offset:{F_ACT}', tag='A')
    em('s_mov_b64 exec, -1')
    for t in range(2):
        em(f'ds_read_b64_tr_b16 v[{32+4*t}:{33+4*t}], v6 offset:{32*t}', tag=f'B{t}a')
        em(f'ds_read_b64_tr_b16 v[{34+4*t}:{35+4*t}], v6 offset:{32*t+4096}', tag=f'B{t}b')
    for t in range(2):
        em.wait_lg(f'B{t}b')
        em(f'v_mfma_f32_16x16x32_bf16 v[{24+4*t}:{27+4*t}], v[8:11], v[{32+4*t}:{35+4*t}], v[{24+4*t}:{27+4*t}]')
    em('v_lshlrev_b32 v48, 2, v3')
    em('s_lshl_b32 s7, s6, 7')
    em(f's_add_u32 s7, s7, {G.WS_Y}')
    em('s_add_u32 s8, s42, s7'); em('s_addc_u32 s9, s43, 0')
    em('s_add_u32 s14, s8, 4096'); em('s_addc_u32 s15, s9, 0')
    em('s_mov_b64 exec, 0xffff')
    for t in range(2):
        for b in range(4):
            base = 's[8:9]' if b < 2 else 's[14:15]'
            em(f'global_atomic_add_f32 v48, v{24+4*t+b}, {base} offset:{2048*(b&1) + 64*t}')
    em('s_mov_b64 exec, -1')
    em.wait_vm_all()
    em('s_barrier')
    em('s_cmp_lg_u32 s6, 0')
    em('s_cbranch_scc1 L_f_arr')
    em('v_mov_b32 v48, 0')
    em('v_mov_b32 v49, 1')
    em('s_mov_b64 exec, 1')
    em('global_atomic_add v50, v48, v49, s[40:41] sc0 sc1')
    em('s_waitcnt vmcnt(0)')
    em(f'ds_write_b32 v48, v50 offset:{F_FLAG}')
    em('s_mov_b64 exec, -1')
    em.label('L_f_arr')
    em.vm = []; em.lg = []
    em('s_waitcnt lgkmcnt(0)')
    em('s_barrier')
    em('v_mov_b32 v48, 0')
    em(f'ds_read_b32 v50, v48 offset:{F_FLAG}')
    em('s_waitcnt lgkmcnt(0)')
    em('v_readfirstlane_b32 s7, v50')
    em(f's_cmp_lg_u32 s7, {NF-1}')
    em('s_cbranch_scc1 L_ffn_end')
    em('v_lshlrev_b32 v48, 3, v0')
    em(f's_add_u32 s8, s42, {G.WS_Y}'); em('s_addc_u32 s9, s43, 0')
    em('global_load_dwordx2 v[50:51], v48, s[8:9] sc1', tag='y')
    em('v_lshrrev_b32 v52, 8, v0')
    em('v_mul_u32_u24 v53, 12288, v52')
    em('v_and_b32 v54, 255, v0')
    em('v_lshlrev_b32 v54, 3, v54')
    em('v_add_u32 v53, v53, v54')
    em('v_add_u32 v53, 10240, v53')
    em('global_load_dwordx2 v[56:57], v53, s[42:43]', tag='gb')
    em(f'ds_read_b64 v[58:59], v48 offset:{F_X1}', tag='x1')
    em.wait_vm('gb')
    em.wait_lg('x1')
    for e in range(2):
        y = f'v{50+e}'; gb = f'v{56+e}'; x1 = f'v{58+e}'
        rnd(em, y, y)
        em(f'v_mul_f32 {y}, {gb}, {y}')
        rnd(em, y, y)
        em(f'v_add_f32 {y}, {x1}, {y}')
    em('v_cvt_pk_bf16_f32 v50, v50, v51')
    em('v_lshlrev_b32 v48, 2, v0')
    em('global_store_dword v48, v50, s[38:39]')
    em.label('L_ffn_end')
    em('s_endpgm')
```

```python
import sys, os
from emit import Em

DEBUG = int(os.environ.get('GEN_DEBUG', '0'))
NS = int(os.environ.get('GEN_NS', '16'))
from gen_common import *
import gen_ffn

def gen_att(em):
    K = 'adaln_att_kernel'
    em.raw(f'.globl {K}\n.p2align 8\n.type {K},@function\n{K}:')
    em('s_cmp_ge_u32 s2, 192')
    em('s_cbranch_scc1 L_att_end')
    em('s_load_dwordx16 s[16:31], s[0:1], 0')
    em('s_load_dwordx8 s[32:39], s[0:1], 64')
    em('s_load_dwordx4 s[40:43], s[0:1], 96')
    em('v_lshrrev_b32 v4, 6, v0')
    em('v_and_b32 v1, 63, v0')
    em('v_lshlrev_b32 v1, 4, v1')
    em('v_readfirstlane_b32 s6, v4')
    em('s_mov_b32 s50, 0x3fb8aa3b')
    em('s_mov_b32 s51, 0x3db504f3')
    em('s_mov_b32 s52, 0x3727c5ac')
    em('s_cmp_lt_u32 s2, 64')
    em('s_cbranch_scc1 L_helper')
    gen_att_role(em)
    em('s_branch L_att_end')
    gen_helper_role(em)
    em.label('L_att_end')
    em('s_endpgm')

def gen_helper_role(em):
    em.label('L_helper')
    em('s_waitcnt lgkmcnt(0)')
    em.lg = []
    em('v_bfe_u32 v3, v0, 3, 3')
    em('v_and_b32 v2, 7, v0')
    em('v_mul_u32_u24 v5, 6144, v3')
    em('v_lshlrev_b32 v4, 4, v2')
    em('v_add_u32 v5, v5, v4')
    em('v_lshlrev_b32 v6, 1, v3')
    em('v_mov_b32 v7, 0')
    for it in range(3):
        em(f's_add_u32 s3, s2, {64*it}')
        em('s_and_b32 s4, s3, 3')
        em('s_lshr_b32 s5, s3, 2')
        if it == 0:
            em('s_cmp_lg_u32 s5, 0')
            em('s_cbranch_scc1 L_nozero')
            em('v_cmp_gt_u32 vcc, 512, v0')
            em('s_and_saveexec_b64 s[10:11], vcc')
            em('s_lshl_b32 s7, s4, 11')
            em(f's_add_u32 s7, s7, {WS_ATT}')
            em('s_add_u32 s8, s42, s7')
            em('s_addc_u32 s9, s43, 0')
            em('v_lshlrev_b32 v8, 2, v0')
            em(f'global_store_dword v8, v7, s[8:9] sc1')
            em(f's_add_u32 s8, s8, {WS_Y-WS_ATT}')
            em('s_addc_u32 s9, s9, 0')
            em(f'global_store_dword v8, v7, s[8:9] sc1')
            em('s_mov_b64 exec, s[10:11]')
            em.label('L_nozero')
        em('s_lshl_b32 s7, s4, 10')
        em('s_lshl_b32 s8, s6, 6')
        em('s_add_u32 s7, s7, s8')
        em('s_add_u32 s44, s34, s7')
        em('s_addc_u32 s45, s35, 0')
        for i in range(4):
            em(f'global_load_ushort v{8+i}, v6, s[44:45] offset:{16*i}', tag=f'c{i}')
        em('s_lshl_b32 s7, s5, 7')
        em(f's_mul_i32 s8, s6, {32*6144}')
        em('s_add_u32 s7, s7, s8')
        em('s_add_u32 s46, s36, s7')
        em('s_addc_u32 s47, s37, 0')
        for i in range(4):
            em(f'global_load_dwordx4 v[{32+4*i}:{35+4*i}], v5, s[46:47]', tag=f'wm{i}')
            if i < 3:
                em(f's_add_u32 s46, s46, {8*6144}')
                em('s_addc_u32 s47, s47, 0')
        for i in range(4):
            em.wait_vm(f'c{i}')
            c = f'v{8+i}'
            em(f'v_lshlrev_b32 {c}, 16, {c}')
            em(f'v_mul_f32 v20, s50, {c}')
            em('v_sub_f32 v20, 0, v20')
            em('v_exp_f32 v20, v20')
            em('v_add_f32 v20, 1.0, v20')
            em('v_rcp_f32 v21, v20')
            em(f'v_mul_f32 v22, {c}, v21')
            em(f'v_fma_f32 v23, -v22, v20, {c}')
            em('v_fma_f32 v20, v23, v21, v22')
            em(f'v_cvt_pk_bf16_f32 v{12+i}, v20, 0')
            em(f'v_lshlrev_b32 v{16+i}, 16, v{12+i}')
        if DEBUG and it == 0:
            em('v_lshlrev_b32 v28, 2, v3')
            em('s_lshl_b32 s7, s4, 11')
            em('s_lshl_b32 s8, s6, 7')
            em('s_add_u32 s7, s7, s8')
            em(f's_add_u32 s7, s7, {WS_DBG + 0x40000}')
            em('s_add_u32 s8, s42, s7'); em('s_addc_u32 s9, s43, 0')
            for i in range(4):
                em(f'global_store_dword v28, v{16+i}, s[8:9] offset:{32*i}')
        for c in range(8):
            em(f'v_mov_b32 v{20+c}, 0')
        for i in range(4):
            em.wait_vm(f'wm{i}')
            for c in range(4):
                em(f'v_dot2c_f32_bf16 v{20+2*c}, v{12+i}, v{32+4*i+c}')
                em(f'v_dot2c_f32_bf16 v{21+2*c}, v{16+i}, v{32+4*i+c}')
        em('s_lshl_b32 s7, s6, 11')
        em('v_lshlrev_b32 v28, 8, v3')
        em('v_lshlrev_b32 v29, 5, v2')
        em('v_add_u32 v28, v28, v29')
        em('v_add_u32 v28, s7, v28')
        em(f'ds_write_b128 v28, v[20:23] offset:{L_PART}')
        em(f'ds_write_b128 v28, v[24:27] offset:{L_PART+16}')
        em.wait_vm_all()
        em.wait_lg_all()
        em('s_barrier')
        em('v_and_b32 v28, 63, v0')
        em('v_lshlrev_b32 v28, 2, v28')
        em('s_lshl_b32 s7, s6, 11')
        em('v_add_u32 v29, s7, v28')
        for e in range(8):
            em(f'ds_read_b32 v{32+e}, v29 offset:{L_PART+256*e}', tag=f'r{e}')
        em.wait_lg('r1')
        em('v_add_f32 v30, v32, v33')
        for e in range(2, 8):
            em.wait_lg(f'r{e}')
            em(f'v_add_f32 v30, v30, v{32+e}')
        em('s_lshl_b32 s7, s6, 8')
        em('v_add_u32 v29, s7, v28')
        em(f'ds_write_b32 v29, v30 offset:{L_ST2}')
        em.wait_lg_all()
        em('s_barrier')
        em('s_cmp_lg_u32 s6, 0')
        em(f's_cbranch_scc1 L_h2skip{it}')
        for e in range(16):
            em(f'ds_read_b32 v{32+e}, v28 offset:{L_ST2+256*e}', tag=f'r{e}')
        em.wait_lg('r1')
        em('v_add_f32 v30, v32, v33')
        for e in range(2, 16):
            em.wait_lg(f'r{e}')
            em(f'v_add_f32 v30, v30, v{32+e}')
        rnd(em, 'v30', 'v30')
        em(f's_mul_i32 s7, s4, 12288')
        em('s_lshl_b32 s8, s5, 8')
        em('s_add_u32 s7, s7, s8')
        em('s_add_u32 s8, s42, s7')
        em('s_addc_u32 s9, s43, 0')
        em(f'global_store_dword v28, v30, s[8:9] offset:{WS_MOD} sc1')
        em.wait_vm_all()
        if it == 0:
            em('s_lshl_b32 s7, s4, 2')
            em('v_mov_b32 v31, s7')
            em('v_mov_b32 v30, 1')
            em('s_mov_b64 exec, 1')
            em('global_atomic_add v31, v30, s[40:41] sc1')
            em('s_mov_b64 exec, -1')
        em.label(f'L_h2skip{it}')
        em.vm = []; em.lg = []
        em('s_barrier')
    em('s_branch L_att_end')

class Stream:
    def __init__(self, em, slot0, ns):
        self.em = em; self.slot0 = slot0; self.ns = ns
        self.desc = []
        self.next = 0
    def slot(self, n):
        b = self.slot0 + 4 * (n % self.ns)
        return b
    def add(self, kind, idx):
        self.desc.append((kind, idx))
    def issue(self):
        em = self.em
        if self.next >= len(self.desc): return
        n = self.next; kind, idx = self.desc[n]
        b = self.slot(n)
        if kind == 'wq':
            em(f'global_load_dwordx4 v[{b}:{b+3}], v15, s[48:49]', tag=('ld', n))
            em('s_add_u32 s48, s48, 32768'); em('s_addc_u32 s49, s49, 0')
        elif kind == 'k':
            em(f'global_load_dwordx4 v[{b}:{b+3}], v1, s[44:45] offset:{(idx%4)*1024} nt', tag=('ld', n))
            if idx % 4 == 3:
                em('s_add_u32 s44, s44, 4096'); em('s_addc_u32 s45, s45, 0')
        elif kind == 'v':
            em(f'global_load_dwordx4 v[{b}:{b+3}], v1, s[46:47] offset:{(idx%4)*1024} nt', tag=('ld', n))
            if idx % 4 == 3:
                em('s_add_u32 s46, s46, 4096'); em('s_addc_u32 s47, s47, 0')
        elif kind == 'wo':
            em(f'global_load_dwordx4 v[{b}:{b+3}], v1, s[54:55] offset:{(idx%4)*1024}', tag=('ld', n))
            if idx % 4 == 3:
                em('s_add_u32 s54, s54, 4096'); em('s_addc_u32 s55, s55, 0')
        self.next += 1
    def wait(self, n):
        self.em.wait_vm(('ld', n))

BINV = [0, 2, 1, 3]

def gen_att_role(em):
    SL0 = 56
    st = Stream(em, SL0, NS)
    for i in range(8): st.add('wq', i)
    for i in range(64): st.add('k', i)
    for i in range(64): st.add('v', i)
    for i in range(8): st.add('wo', i)
    NWQ, NK = 8, 64
    em('s_sub_u32 s3, s2, 64')
    em('s_and_b32 s7, s3, 7')
    em('s_bfe_u32 s8, s3, 0x20003')
    em('s_lshl_b32 s8, s8, 3')
    em('s_add_u32 s5, s7, s8')
    em('s_lshr_b32 s4, s3, 5')
    em('v_and_b32 v2, 15, v0')
    em('v_bfe_u32 v3, v0, 4, 2')
    em('s_waitcnt lgkmcnt(0)')
    em('s_lshl_b32 s7, s4, 5')
    em('s_add_u32 s7, s7, s5')
    em('s_lshl_b32 s8, s7, 20')
    em('s_lshl_b32 s9, s6, 16')
    em('s_add_u32 s8, s8, s9')
    em('s_add_u32 s44, s18, s8'); em('s_addc_u32 s45, s19, 0')
    em('s_add_u32 s46, s20, s8'); em('s_addc_u32 s47, s21, 0')
    em('s_lshl_b32 s8, s5, 8')
    em('s_lshl_b32 s9, s6, 18')
    em('s_add_u32 s8, s8, s9')
    em('s_add_u32 s48, s22, s8'); em('s_addc_u32 s49, s23, 0')
    em('v_lshlrev_b32 v15, 13, v3')
    em('v_lshlrev_b32 v4, 4, v2')
    em('v_add_u32 v15, v15, v4')
    em('s_lshl_b32 s8, s5, 17')
    em('s_lshl_b32 s9, s6, 13')
    em('s_add_u32 s8, s8, s9')
    em('s_add_u32 s54, s24, s8'); em('s_addc_u32 s55, s25, 0')
    em('s_lshl_b32 s7, s4, 10')
    em('s_add_u32 s10, s16, s7'); em('s_addc_u32 s11, s17, 0')
    em('global_load_dwordx4 v[8:11], v1, s[10:11]', tag='xrow')
    em('v_and_b32 v4, 12, v2')
    em('v_add_u32 v4, v4, v3')
    em('s_lshl_b32 s7, s6, 5')
    em('v_add_u32 v4, s7, v4')
    em('v_lshlrev_b32 v5, 1, v4')
    em('global_load_ushort v12, v5, s[10:11]', tag='xg0')
    em('global_load_ushort v13, v5, s[10:11] offset:32', tag='xg1')
    em('v_lshlrev_b32 v6, 2, v4')
    for _ in range(NS): st.issue()
    em.wait_vm('xrow')
    xs = ['v28', 'v29', 'v30', 'v31', 'v32', 'v33', 'v34', 'v35']
    for c in range(4):
        em(f'v_lshlrev_b32 {xs[2*c]}, 16, v{8+c}')
        em(f'v_and_b32 {xs[2*c+1]}, 0xffff0000, v{8+c}')
    em('v_add_f32 v7, v28, v29')
    for c in range(2, 8): em(f'v_add_f32 v7, v7, {xs[c]}')
    wave_allreduce(em, 'v_add_f32', 'v7', 'v14')
    em('v_mul_f32 v7, 0x3b000000, v7')
    em(f'v_sub_f32 v14, {xs[0]}, v7')
    em('v_mul_f32 v36, v14, v14')
    for c in range(1, 8):
        em(f'v_sub_f32 v14, {xs[c]}, v7')
        em('v_fmac_f32 v36, v14, v14')
    wave_allreduce(em, 'v_add_f32', 'v36', 'v14')
    em('v_mul_f32 v36, 0x3b000000, v36')
    rnd(em, 'v7', 'v7')
    rnd(em, 'v36', 'v36')
    em('v_add_f32 v36, s52, v36')
    rnd(em, 'v36', 'v36')
    em('v_sqrt_f32 v36, v36')
    rnd(em, 'v36', 'v36')
    em('v_rcp_f32 v37, v36')
    for r, xv in enumerate(('v12', 'v13')):
        em.wait_vm(f'xg{r}')
        em(f'v_lshlrev_b32 {xv}, 16, {xv}')
        em(f'v_sub_f32 {xv}, {xv}, v7')
        rnd(em, xv, xv)
        em(f'v_mul_f32 v14, {xv}, v37')
        em(f'v_fma_f32 v38, -v14, v36, {xv}')
        em(f'v_fma_f32 v14, v38, v37, v14')
        rnd(em, xv, 'v14')
    em('s_cmp_lg_u32 s6, 0')
    em('s_cbranch_scc1 L_poll_done')
    em('s_lshl_b32 s7, s4, 2')
    em('v_mov_b32 v14, s7')
    em('s_mov_b32 s8, 0')
    em.label('L_poll')
    em('global_load_dword v38, v14, s[40:41] sc1')
    em('s_waitcnt vmcnt(0)')
    em('v_readfirstlane_b32 s7, v38')
    em('s_add_u32 s8, s8, 1')
    em('s_cmp_ge_u32 s8, 400000')
    em('s_cbranch_scc1 L_poll_done')
    em('s_cmp_ge_u32 s7, 16')
    em('s_cbranch_scc1 L_poll_done')
    em('s_sleep 1')
    em('s_branch L_poll')
    em.label('L_poll_done')
    em('s_barrier')
    em('s_mul_i32 s7, s4, 12288')
    em('s_add_u32 s8, s42, s7'); em('s_addc_u32 s9, s43, 0')
    em(f'global_load_dword v28, v6, s[8:9] offset:{WS_MOD} sc1', tag='sa0')
    em(f'global_load_dword v29, v6, s[8:9] offset:{WS_MOD+2048} sc1', tag='ca0')
    em(f'global_load_dword v30, v6, s[8:9] offset:{WS_MOD+64} sc1', tag='sa1')
    em(f'global_load_dword v31, v6, s[8:9] offset:{WS_MOD+2048+64} sc1', tag='ca1')
    for r, (nv, sa, ca) in enumerate((('v12', 'v28', 'v29'), ('v13', 'v30', 'v31'))):
        em.wait_vm(f'ca{r}')
        em(f'v_add_f32 {ca}, 1.0, {ca}')
        rnd(em, ca, ca)
        em(f'v_mul_f32 {ca}, {nv}, {ca}')
        rnd(em, ca, ca)
        em(f'v_add_f32 {ca}, {ca}, {sa}')
        em(f'v_cvt_pk_bf16_f32 v{36+r}, {ca}, 0')
        em(f'v_lshlrev_b32 v{38+r}, 16, v{36+r}')
    for c in range(8): em(f'v_mov_b32 v{20+c}, 0')
    for i in range(NWQ):
        st.wait(i)
        b = st.slot(i)
        for c in range(4):
            em(f'v_dot2c_f32_bf16_dpp v{20+2*c}, v{36+(i>>2)}, v{b+c} row_newbcast:{4*(i&3)} {DPPM}')
            em(f'v_dot2c_f32_bf16_dpp v{21+2*c}, v{38+(i>>2)}, v{b+c} row_newbcast:{4*(i&3)} {DPPM}')
        st.issue()
    reduce128(em, 'q')
    if DEBUG:
        em('v_cmp_gt_u32 vcc, 128, v0')
        em('s_and_saveexec_b64 s[12:13], vcc')
        em('v_lshlrev_b32 v28, 1, v0')
        em(f'ds_read_u16 v29, v28 offset:{L_Q}')
        em.wait_lg_all()
        em('v_lshlrev_b32 v29, 16, v29')
        em('s_lshl_b32 s7, s4, 5'); em('s_add_u32 s7, s7, s5'); em('s_lshl_b32 s7, s7, 9')
        em(f's_add_u32 s8, s42, s7'); em('s_addc_u32 s9, s43, 0')
        em('v_lshlrev_b32 v28, 2, v0')
        em(f's_add_u32 s8, s8, {WS_DBG}'); em('s_addc_u32 s9, s9, 0')
        em(f'global_store_dword v28, v29, s[8:9]')
        em('s_mov_b64 exec, s[12:13]')
    T = [['v28', 'v29', 'v30', 'v31'], ['v32', 'v33', 'v34', 'v35']]
    S = [f'v{36+r}' for r in range(16)]
    def merges(r):
        t = T[r & 1]
        return [
            f'v_add_f32_dpp {t[0]}, {t[0]}, {t[0]} row_ror:8 {DPPM}',
            f'v_add_f32_dpp {t[2]}, {t[2]}, {t[2]} row_ror:8 {DPPM}',
            f'v_add_f32_dpp {t[0]}, {t[1]}, {t[1]} row_ror:8 row_mask:0xf bank_mask:0xc',
            f'v_add_f32_dpp {t[2]}, {t[3]}, {t[3]} row_ror:8 row_mask:0xf bank_mask:0xc',
            f'v_add_f32_dpp {t[0]}, {t[0]}, {t[0]} row_ror:12 {DPPM}',
            f'v_add_f32_dpp {t[0]}, {t[2]}, {t[2]} row_ror:4 row_mask:0xf bank_mask:0xa',
            f'v_add_f32_dpp {t[0]}, {t[0]}, {t[0]} quad_perm:[2,3,0,1] {DPPM}',
            f'v_add_f32_dpp {S[r]}, {t[0]}, {t[0]} quad_perm:[1,0,3,2] {DPPM} bound_ctrl:0',
        ]
    pend = []
    for r in range(16):
        for e in range(4):
            i = 4 * r + e
            n = NWQ + i
            st.wait(n)
            b = st.slot(n)
            t = T[r & 1][e]
            em(f'v_dot2_f32_bf16 {t}, v{b}, v16, 0')
            for c in range(1, 4):
                em(f'v_dot2_f32_bf16 {t}, v{b+c}, v{16+c}, {t}')
            st.issue()
            for _ in range(2):
                if pend: em(pend.pop(0))
        assert not pend
        pend = merges(r)
    for m in pend: em(m)
    for r in range(16):
        rnd(em, S[r], S[r])
        em(f'v_mul_f32 {S[r]}, s51, {S[r]}')
        rnd(em, S[r], S[r])
    em(f'v_max3_f32 v7, {S[0]}, {S[1]}, {S[2]}')
    for r in range(3, 15, 2):
        em(f'v_max3_f32 v7, v7, {S[r]}, {S[r+1]}')
    em(f'v_max_f32 v7, v7, {S[15]}')
    wave_allreduce(em, 'v_max_f32', 'v7', 'v14', levels=(8, 4))
    em('v_mov_b32 v12, 0')
    for r in range(16):
        em(f'v_sub_f32 v14, {S[r]}, v7')
        em('v_mul_f32 v14, s50, v14')
        em('v_exp_f32 v14, v14')
        em('v_add_f32 v12, v12, v14')
    wave_allreduce(em, 'v_add_f32', 'v12', 'v14', levels=(8, 4))
    em('v_mov_b32 v8, v7'); em('v_mov_b32 v9, v12')
    em('s_lshl_b32 s7, s6, 3')
    em('v_mov_b32 v14, s7')
    em('s_mov_b64 exec, 1')
    em(f'ds_write_b64 v14, v[8:9] offset:{L_STAT}')
    em('s_mov_b64 exec, -1')
    em.wait_lg_all()
    em('s_barrier')
    em('v_lshlrev_b32 v14, 3, v2')
    em(f'ds_read_b64 v[8:9], v14 offset:{L_STAT}', tag='st')
    em.wait_lg('st')
    em('v_mov_b32 v7, v8')
    row_allreduce(em, 'v_max_f32', 'v7')
    em('v_sub_f32 v14, v8, v7')
    em('v_mul_f32 v14, s50, v14')
    em('v_exp_f32 v14, v14')
    em('v_mul_f32 v12, v9, v14')
    row_allreduce(em, 'v_add_f32', 'v12')
    em('v_rcp_f32 v12, v12')
    for r in range(16):
        em(f'v_sub_f32 v14, {S[r]}, v7')
        em('v_mul_f32 v14, s50, v14')
        em('v_exp_f32 v14, v14')
        em('v_mul_f32 v14, v14, v12')
        em(f'v_cvt_pk_bf16_f32 {S[r]}, v14, 0')
    for c in range(8): em(f'v_mov_b32 v{20+c}, 0')
    for r in range(16):
        hi = f'v{52 + (r & 1)}'
        em(f'v_lshlrev_b32 {hi}, 16, {S[r]}')
        for e in range(4):
            i = 4 * r + e
            n = NWQ + NK + i
            st.wait(n)
            b = st.slot(n)
            bc = 4 * BINV[e]
            for c in range(4):
                em(f'v_dot2c_f32_bf16_dpp v{20+2*c}, {S[r]}, v{b+c} row_newbcast:{bc} {DPPM}')
                em(f'v_dot2c_f32_bf16_dpp v{21+2*c}, {hi}, v{b+c} row_newbcast:{bc} {DPPM}')
            st.issue()
    reduce128(em, 'o')
    if DEBUG:
        em('v_cmp_gt_u32 vcc, 128, v0')
        em('s_and_saveexec_b64 s[12:13], vcc')
        em('v_lshlrev_b32 v28, 2, v0')
        em(f'ds_read_b32 v29, v28 offset:{L_OHI}')
        em.wait_lg_all()
        em('s_lshl_b32 s7, s4, 5'); em('s_add_u32 s7, s7, s5'); em('s_lshl_b32 s7, s7, 9')
        em(f's_add_u32 s8, s42, s7'); em('s_addc_u32 s9, s43, 0')
        em(f's_add_u32 s8, s8, {WS_DBG + 0x10000}'); em('s_addc_u32 s9, s9, 0')
        em(f'global_store_dword v28, v29, s[8:9]')
        em('s_mov_b64 exec, s[12:13]')
    em('s_lshl_b32 s7, s6, 5')
    em('v_mov_b32 v14, s7')
    em(f'ds_read_b128 v[28:31], v14 offset:{L_OLO}', tag='ol0')
    em(f'ds_read_b128 v[32:35], v14 offset:{L_OLO+16}', tag='ol1')
    em(f'ds_read_b128 v[36:39], v14 offset:{L_OHI}', tag='oh0')
    em(f'ds_read_b128 v[40:43], v14 offset:{L_OHI+16}', tag='oh1')
    for c in range(8): em(f'v_mov_b32 v{20+c}, 0')
    em.wait_lg('oh1')
    for e in range(8):
        n = NWQ + NK + 64 + e
        st.wait(n)
        b = st.slot(n)
        for c in range(4):
            em(f'v_dot2c_f32_bf16 v{20+2*c}, v{28+e}, v{b+c}')
            em(f'v_dot2c_f32_bf16 v{21+2*c}, v{36+e}, v{b+c}')
    em('s_lshl_b32 s7, s6, 11')
    em('v_lshlrev_b32 v14, 1, v1')
    em('v_add_u32 v14, s7, v14')
    em(f'ds_write_b128 v14, v[20:23] offset:{L_PART}')
    em(f'ds_write_b128 v14, v[24:27] offset:{L_PART+16}')
    em.wait_lg_all()
    em('s_barrier')
    em('s_cmp_ge_u32 s6, 8')
    em('s_cbranch_scc1 L_att_role_end')
    em('v_lshlrev_b32 v14, 2, v0')
    for e in range(16):
        em(f'ds_read_b32 v{28+e}, v14 offset:{L_PART+2048*e}', tag=f'r{e}')
    em.wait_lg('r1')
    em('v_add_f32 v12, v28, v29')
    for e in range(2, 16):
        em.wait_lg(f'r{e}')
        em(f'v_add_f32 v12, v12, v{28+e}')
    em('s_lshl_b32 s7, s4, 11')
    em(f's_add_u32 s7, s7, {WS_ATT}')
    em('s_add_u32 s8, s42, s7'); em('s_addc_u32 s9, s43, 0')
    em(f'global_atomic_add_f32 v14, v12, s[8:9]')
    em.label('L_att_role_end')

def reduce128(em, what):
    em('s_lshl_b32 s7, s6, 11')
    em('v_lshlrev_b32 v14, 9, v3')
    em('v_lshlrev_b32 v13, 5, v2')
    em('v_add_u32 v14, v14, v13')
    em('v_add_u32 v14, s7, v14')
    em(f'ds_write_b128 v14, v[20:23] offset:{L_PART}')
    em(f'ds_write_b128 v14, v[24:27] offset:{L_PART+16}')
    em.wait_lg_all()
    em('s_barrier')
    em('v_and_b32 v13, 127, v0')
    em('v_lshlrev_b32 v13, 2, v13')
    em('v_lshrrev_b32 v14, 7, v0')
    em('v_lshlrev_b32 v12, 12, v14')
    em('v_add_u32 v12, v12, v13')
    for e in range(8):
        em(f'ds_read_b32 v{28+e}, v12 offset:{L_PART+512*e}', tag=f'r{e}')
    em.wait_lg('r1')
    em('v_add_f32 v8, v28, v29')
    for e in range(2, 8):
        em.wait_lg(f'r{e}')
        em(f'v_add_f32 v8, v8, v{28+e}')
    em('v_lshlrev_b32 v12, 9, v14')
    em('v_add_u32 v12, v12, v13')
    em(f'ds_write_b32 v12, v8 offset:{L_ST2}')
    em.wait_lg_all()
    em('s_barrier')
    em('s_cmp_ge_u32 s6, 2')
    em(f's_cbranch_scc1 L_red_skip_{what}')
    for e in range(8):
        em(f'ds_read_b32 v{28+e}, v13 offset:{L_ST2+512*e}', tag=f'r{e}')
    em.wait_lg('r1')
    em('v_add_f32 v8, v28, v29')
    for e in range(2, 8):
        em.wait_lg(f'r{e}')
        em(f'v_add_f32 v8, v8, v{28+e}')
    em('v_cvt_pk_bf16_f32 v8, v8, 0')
    if what == 'q':
        em('v_lshrrev_b32 v12, 1, v13')
        em(f'ds_write_b16 v12, v8 offset:{L_Q}')
    else:
        em(f'ds_write_b32 v13, v8 offset:{L_OLO}')
        em('v_lshlrev_b32 v8, 16, v8')
        em(f'ds_write_b32 v13, v8 offset:{L_OHI}')
    em.label(f'L_red_skip_{what}')
    em.lg = []
    em('s_waitcnt lgkmcnt(0)')
    em('s_barrier')
    if what == 'q':
        em('v_lshlrev_b32 v12, 4, v2')
        em(f'ds_read_b128 v[16:19], v12 offset:{L_Q}', tag='qq')
        em.wait_lg('qq')

def kdesc(name, vgpr, sgpr, lds):
    return f'''.amdhsa_kernel {name}
  .amdhsa_next_free_vgpr {vgpr}
  .amdhsa_next_free_sgpr {sgpr}
  .amdhsa_accum_offset {(vgpr+3)//4*4}
  .amdhsa_group_segment_fixed_size 0
  .amdhsa_kernarg_size 112
  .amdhsa_user_sgpr_count 2
  .amdhsa_user_sgpr_kernarg_segment_ptr 1
  .amdhsa_system_sgpr_workgroup_id_x 1
.end_amdhsa_kernel
'''

def main():
    out = sys.argv[1]
    em = Em()
    hdr = [f'; @launch kernel=adaln_att_kernel grid=(192,1,1) block=(1024,1,1) lds={LDS_BYTES}',
           f'; @launch kernel=adaln_ffn_kernel grid=({gen_ffn.NF},1,1) block=(1024,1,1) lds={gen_ffn.F_LDS}',
           '.amdgcn_target "amdgcn-amd-amdhsa--gfx950"', '.text']
    gen_att(em)
    gen_ffn.gen_ffn(em, DEBUG)
    txt = '\n'.join(hdr) + '\n' + em.text()
    txt += '.section .rodata,"a"\n.p2align 6\n' + kdesc('adaln_att_kernel', 56 + 4 * NS, 64, LDS_BYTES) + kdesc('adaln_ffn_kernel', 96, 64, gen_ffn.F_LDS)
    open(out, 'w').write(txt)

main()
```

```python
from emit import Em
import os
import gen_common as G
from gen_common import *

NF = 56
F_H2 = 0
F_X1 = 4096
F_ACT = 12288
F_FLAG = 12544
F_W = 16384
F_WD = 81920
F_LDS = 114688

STAMP = int(os.environ.get('GEN_STAMP', '0'))
stamp_n = [0]
def stamp(em):
    if not STAMP: return
    i = stamp_n[0]; stamp_n[0] += 1
    em(f's_memrealtime s[{64+2*i}:{65+2*i}]')
    em('s_waitcnt lgkmcnt(0)')
    em.lg = []

def gen_ffn(em, DEBUG=0):
    K = 'adaln_ffn_kernel'
    em.raw(f'.globl {K}\n.p2align 8\n.type {K},@function\n{K}:')
    em(f's_cmp_ge_u32 s2, {NF}')
    em('s_cbranch_scc1 L_ffn_end')
    em('s_load_dwordx16 s[16:31], s[0:1], 0')
    em('s_load_dwordx8 s[32:39], s[0:1], 64')
    em('s_load_dwordx4 s[40:43], s[0:1], 96')
    em('v_lshrrev_b32 v4, 6, v0')
    em('v_and_b32 v1, 63, v0')
    em('v_readfirstlane_b32 s6, v4')
    em('v_lshlrev_b32 v2, 4, v1')
    em('s_mov_b32 s50, 0x3fb8aa3b')
    em('s_mov_b32 s52, 0x3727c5ac')
    em('s_waitcnt lgkmcnt(0)')
    stamp(em)
    em('v_lshrrev_b32 v3, 2, v1')
    em('v_mul_u32_u24 v5, 3584, v3')
    em('v_and_b32 v6, 3, v1')
    em('v_lshlrev_b32 v6, 4, v6')
    em('v_add_u32 v5, v5, v6')
    em(f's_mul_i32 s7, s6, {32*3584}')
    em('s_lshl_b32 s8, s2, 6')
    em('s_add_u32 s7, s7, s8')
    em('s_add_u32 s44, s28, s7'); em('s_addc_u32 s45, s29, 0')
    em('s_add_u32 s46, s30, s7'); em('s_addc_u32 s47, s31, 0')
    em('global_load_dwordx4 v[64:67], v5, s[44:45]', tag='wg0')
    em('global_load_dwordx4 v[72:75], v5, s[46:47]', tag='wu0')
    em(f's_add_u32 s44, s44, {16*3584}'); em('s_addc_u32 s45, s45, 0')
    em(f's_add_u32 s46, s46, {16*3584}'); em('s_addc_u32 s47, s47, 0')
    em('global_load_dwordx4 v[68:71], v5, s[44:45]', tag='wg1')
    em('global_load_dwordx4 v[76:79], v5, s[46:47]', tag='wu1')
    em('s_lshl_b32 s7, s2, 15')
    em('s_lshl_b32 s8, s6, 11')
    em('s_add_u32 s7, s7, s8')
    em('s_add_u32 s48, s32, s7'); em('s_addc_u32 s49, s33, 0')
    em('global_load_dwordx4 v[80:83], v2, s[48:49]', tag='wd0')
    em('global_load_dwordx4 v[84:87], v2, s[48:49] offset:1024', tag='wd1')
    em('s_cmp_ge_u32 s6, 4')
    em('s_cbranch_scc1 L_f_skip1')
    em('s_lshl_b32 s7, s6, 10')
    em('s_add_u32 s8, s16, s7'); em('s_addc_u32 s9, s17, 0')
    em('global_load_dwordx4 v[8:11], v2, s[8:9]', tag='x')
    em('v_lshlrev_b32 v3, 5, v1')
    em('s_lshl_b32 s7, s6, 11')
    em(f's_add_u32 s7, s7, {G.WS_ATT}')
    em('s_add_u32 s8, s42, s7'); em('s_addc_u32 s9, s43, 0')
    em('global_load_dwordx4 v[12:15], v3, s[8:9]', tag='a0')
    em('global_load_dwordx4 v[16:19], v3, s[8:9] offset:16', tag='a1')
    em('s_mul_i32 s7, s6, 12288')
    em('s_add_u32 s8, s42, s7'); em('s_addc_u32 s9, s43, 0')
    em('s_add_u32 s8, s8, 4096'); em('s_addc_u32 s9, s9, 0')
    em('global_load_dwordx4 v[20:23], v3, s[8:9]', tag='ga0')
    em('global_load_dwordx4 v[24:27], v3, s[8:9] offset:16', tag='ga1')
    em('global_load_dwordx4 v[28:31], v3, s[8:9] offset:2048', tag='sb0')
    em('global_load_dwordx4 v[32:35], v3, s[8:9] offset:2064', tag='sb1')
    em('s_add_u32 s8, s8, 4096'); em('s_addc_u32 s9, s9, 0')
    em('global_load_dwordx4 v[36:39], v3, s[8:9]', tag='cb0')
    em('global_load_dwordx4 v[40:43], v3, s[8:9] offset:16', tag='cb1')
    em.wait_vm('ga1')
    for c in range(4):
        em(f'v_lshlrev_b32 v{44+2*c}, 16, v{8+c}')
        em(f'v_and_b32 v{45+2*c}, 0xffff0000, v{8+c}')
    for e in range(8):
        a = f'v{12+e}'; ga = f'v{20+e}'; x1 = f'v{44+e}'
        rnd(em, a, a)
        em(f'v_mul_f32 {a}, {ga}, {a}')
        rnd(em, a, a)
        em(f'v_add_f32 {x1}, {x1}, {a}')
        rnd(em, x1, x1)
    em('s_lshl_b32 s7, s6, 11')
    em('v_add_u32 v3, s7, v3')
    em(f'ds_write_b128 v3, v[44:47] offset:{F_X1}')
    em(f'ds_write_b128 v3, v[48:51] offset:{F_X1+16}')
    xs = [f'v{44+e}' for e in range(8)]
    ln_stats(em, xs, 'v7', 'v52', 'v53', 'v54')
    em.wait_vm('cb1')
    for e in range(8):
        x = xs[e]; sb = f'v{28+e}'; cb = f'v{36+e}'
        em(f'v_sub_f32 {x}, {x}, v7')
        rnd(em, x, x)
        em(f'v_mul_f32 v54, {x}, v53')
        em(f'v_fma_f32 v55, -v54, v52, {x}')
        em(f'v_fma_f32 v54, v55, v53, v54')
        rnd(em, x, 'v54')
        em(f'v_add_f32 {cb}, 1.0, {cb}')
        rnd(em, cb, cb)
        em(f'v_mul_f32 {x}, {x}, {cb}')
        rnd(em, x, x)
        em(f'v_add_f32 {x}, {x}, {sb}')
    for c in range(4):
        em(f'v_cvt_pk_bf16_f32 v{8+c}, v{44+2*c}, v{45+2*c}')
    em('s_lshl_b32 s7, s6, 10')
    em('v_add_u32 v3, s7, v2')
    em(f'ds_write_b128 v3, v[8:11] offset:{F_H2}')
    em.label('L_f_skip1')
    stamp(em)
    em.vm = ['wg0', 'wu0', 'wg1', 'wu1', 'wd0', 'wd1']
    em('v_lshrrev_b32 v3, 2, v1')
    em('v_lshlrev_b32 v3, 7, v3')
    em('v_and_b32 v4, 3, v1')
    em('v_lshlrev_b32 v4, 4, v4')
    em('v_add_u32 v3, v3, v4')
    em('s_lshl_b32 s7, s6, 12')
    em(f's_add_u32 s7, s7, {F_W}')
    em('v_add_u32 v3, s7, v3')
    em.wait_vm('wg0')
    em(f'ds_write_b128 v3, v[64:67] offset:0')
    em.wait_vm('wu0')
    em(f'ds_write_b128 v3, v[72:75] offset:64')
    em.wait_vm('wg1')
    em(f'ds_write_b128 v3, v[68:71] offset:2048')
    em.wait_vm('wu1')
    em(f'ds_write_b128 v3, v[76:79] offset:2112')
    em('s_lshl_b32 s7, s6, 11')
    em(f'v_add_u32 v3, s7, v2')
    em(f'v_add_u32 v3, {F_WD}, v3')
    em.wait_vm('wd0')
    em(f'ds_write_b128 v3, v[80:83]')
    em.wait_vm('wd1')
    em(f'ds_write_b128 v3, v[84:87] offset:1024')
    em.wait_vm_all()
    em.wait_lg_all()
    em('s_barrier')
    stamp(em)
    em('s_cmp_ge_u32 s6, 2')
    em('s_cbranch_scc1 L_f_skip2')
    em('v_and_b32 v3, 15, v1')
    em('v_lshlrev_b32 v4, 10, v3')
    em('v_lshrrev_b32 v5, 4, v1')
    em('v_lshlrev_b32 v6, 4, v5')
    em('v_add_u32 v4, v4, v6')
    em('v_lshlrev_b32 v6, 3, v5')
    em('v_lshrrev_b32 v7, 2, v3')
    em('v_add_u32 v6, v6, v7')
    em('v_lshlrev_b32 v6, 7, v6')
    em('v_and_b32 v7, 3, v3')
    em('v_lshlrev_b32 v7, 3, v7')
    em('v_add_u32 v6, v6, v7')
    em('s_lshl_b32 s7, s6, 5')
    em(f's_add_u32 s7, s7, {F_W}')
    em('v_add_u32 v6, s7, v6')
    for r in range(8): em(f'v_mov_b32 v{8+r}, 0')
    for r in range(8): em(f'v_mov_b32 v{24+r}, 0')
    em('s_mov_b32 s10, 0x000f000f'); em('s_mov_b32 s11, 0x000f000f')
    for ks in range(16):
        a = 8 + 4 * (ks & 1)
        bg = 32 + 8 * (ks & 1)
        em('s_mov_b64 exec, s[10:11]')
        em(f'ds_read_b128 v[{a}:{a+3}], v4 offset:{F_H2 + ks*64}', tag=f'A{ks}')
        em('s_mov_b64 exec, -1')
        em(f'ds_read_b64_tr_b16 v[{bg}:{bg+1}], v6 offset:{ks*4096}', tag=f'Bg{ks}a')
        em(f'ds_read_b64_tr_b16 v[{bg+2}:{bg+3}], v6 offset:{ks*4096 + 512}', tag=f'Bg{ks}b')
        em(f'ds_read_b64_tr_b16 v[{bg+4}:{bg+5}], v6 offset:{ks*4096 + 64}', tag=f'Bu{ks}a')
        em(f'ds_read_b64_tr_b16 v[{bg+6}:{bg+7}], v6 offset:{ks*4096 + 512 + 64}', tag=f'Bu{ks}b')
        em.wait_lg(f'Bg{ks}b')
        em(f'v_mfma_f32_16x16x32_bf16 v[24:27], v[{a}:{a+3}], v[{bg}:{bg+3}], v[24:27]')
        em.wait_lg(f'Bu{ks}b')
        em(f'v_mfma_f32_16x16x32_bf16 v[28:31], v[{a}:{a+3}], v[{bg+4}:{bg+7}], v[28:31]')
    em('s_mov_b32 s12, 0x3f4c422a')
    em('s_mov_b32 s13, 0x3d372713')
    for b in range(4):
        g = f'v{24+b}'; u = f'v{28+b}'
        rnd(em, g, g); rnd(em, u, u)
        em(f'v_mul_f32 v48, {g}, {g}')
        em(f'v_mul_f32 v48, v48, {g}')
        em(f'v_mul_f32 v48, s13, v48')
        em(f'v_add_f32 v48, {g}, v48')
        em(f'v_mul_f32 v48, s12, v48')
        em('v_add_f32 v48, v48, v48')
        em('v_mul_f32 v48, s50, v48')
        em('v_exp_f32 v48, v48')
        em('v_add_f32 v48, 1.0, v48')
        em('v_rcp_f32 v48, v48')
        em('v_add_f32 v48, v48, v48')
        em('v_sub_f32 v48, 1.0, v48')
        em('v_add_f32 v48, 1.0, v48')
        em(f'v_mul_f32 v49, 0.5, {g}')
        em('v_mul_f32 v48, v49, v48')
        rnd(em, 'v48', 'v48')
        em(f'v_mul_f32 v48, v48, {u}')
        em(f'v_cvt_pk_bf16_f32 v{50+b}, v48, 0')
    em('v_lshlrev_b32 v48, 1, v3')
    em('s_lshl_b32 s7, s6, 5')
    em('v_add_u32 v48, s7, v48')
    em('s_mov_b64 exec, 0xffff')
    for b in range(4):
        em(f'ds_write_b16 v48, v{50+b} offset:{F_ACT + 64*b}')
    em('s_mov_b64 exec, -1')
    em.label('L_f_skip2')
    em.lg = []
    em('s_waitcnt lgkmcnt(0)')
    em('s_barrier')
    stamp(em)
    if DEBUG:
        pass
    em('v_and_b32 v3, 15, v1')
    em('v_lshrrev_b32 v5, 4, v1')
    em('v_lshlrev_b32 v4, 6, v3')
    em('v_lshlrev_b32 v6, 4, v5')
    em('v_add_u32 v4, v4, v6')
    em('v_lshlrev_b32 v6, 3, v5')
    em('v_lshrrev_b32 v7, 2, v3')
    em('v_add_u32 v6, v6, v7')
    em('v_lshlrev_b32 v6, 10, v6')
    em('v_and_b32 v7, 3, v3')
    em('v_lshlrev_b32 v7, 3, v7')
    em('v_add_u32 v6, v6, v7')
    em('s_lshl_b32 s7, s6, 6')
    em(f's_add_u32 s7, s7, {F_WD}')
    em('v_add_u32 v6, s7, v6')
    for r in range(4): em(f'v_mov_b32 v{8+r}, 0')
    for r in range(8): em(f'v_mov_b32 v{24+r}, 0')
    em('s_mov_b64 exec, s[10:11]') if False else None
    em('s_mov_b32 s10, 0x000f000f'); em('s_mov_b32 s11, 0x000f000f')
    em('s_mov_b64 exec, s[10:11]')
    em(f'ds_read_b128 v[8:11], v4 offset:{F_ACT}', tag='A')
    em('s_mov_b64 exec, -1')
    for t in range(2):
        em(f'ds_read_b64_tr_b16 v[{32+4*t}:{33+4*t}], v6 offset:{32*t}', tag=f'B{t}a')
        em(f'ds_read_b64_tr_b16 v[{34+4*t}:{35+4*t}], v6 offset:{32*t+4096}', tag=f'B{t}b')
    for t in range(2):
        em.wait_lg(f'B{t}b')
        em(f'v_mfma_f32_16x16x32_bf16 v[{24+4*t}:{27+4*t}], v[8:11], v[{32+4*t}:{35+4*t}], v[{24+4*t}:{27+4*t}]')
    em('v_lshlrev_b32 v48, 2, v3')
    em('s_lshl_b32 s7, s6, 7')
    em(f's_add_u32 s7, s7, {G.WS_Y}')
    em('s_add_u32 s8, s42, s7'); em('s_addc_u32 s9, s43, 0')
    em('s_add_u32 s14, s8, 4096'); em('s_addc_u32 s15, s9, 0')
    em('s_mov_b64 exec, 0xffff')
    for t in range(2):
        for b in range(4):
            base = 's[8:9]' if b < 2 else 's[14:15]'
            em(f'global_atomic_add_f32 v48, v{24+4*t+b}, {base} offset:{2048*(b&1) + 64*t}')
    em('s_mov_b64 exec, -1')
    em.wait_vm_all()
    em('s_barrier')
    stamp(em)
    em('s_cmp_lg_u32 s6, 0')
    em('s_cbranch_scc1 L_f_arr')
    em('v_mov_b32 v48, 0')
    em('v_mov_b32 v49, 1')
    em('s_mov_b64 exec, 1')
    em('global_atomic_add v50, v48, v49, s[40:41] sc0 sc1')
    em('s_waitcnt vmcnt(0)')
    em(f'ds_write_b32 v48, v50 offset:{F_FLAG}')
    em('s_mov_b64 exec, -1')
    em.label('L_f_arr')
    em.vm = []; em.lg = []
    em('s_waitcnt lgkmcnt(0)')
    em('s_barrier')
    em('v_mov_b32 v48, 0')
    em(f'ds_read_b32 v50, v48 offset:{F_FLAG}')
    em('s_waitcnt lgkmcnt(0)')
    em('v_readfirstlane_b32 s7, v50')
    stamp(em)
    if STAMP:
        em('s_lshl_b32 s8, s2, 6')
        em(f's_add_u32 s8, s8, {G.WS_DBG + 0x90000}')
        em('s_add_u32 s8, s42, s8'); em('s_addc_u32 s9, s43, 0')
        em('v_mov_b32 v60, 0')
        for i in range(stamp_n[0]):
            em(f'v_mov_b32 v61, s{64+2*i}')
            em(f'global_store_dword v60, v61, s[8:9] offset:{4*i}')
    em(f's_cmp_lg_u32 s7, {NF-1}')
    em('s_cbranch_scc1 L_ffn_end')
    em('v_lshlrev_b32 v48, 3, v0')
    em(f's_add_u32 s8, s42, {G.WS_Y}'); em('s_addc_u32 s9, s43, 0')
    em('global_load_dwordx2 v[50:51], v48, s[8:9] sc1', tag='y')
    em('v_lshrrev_b32 v52, 8, v0')
    em('v_mul_u32_u24 v53, 12288, v52')
    em('v_and_b32 v54, 255, v0')
    em('v_lshlrev_b32 v54, 3, v54')
    em('v_add_u32 v53, v53, v54')
    em('v_add_u32 v53, 10240, v53')
    em('global_load_dwordx2 v[56:57], v53, s[42:43]', tag='gb')
    em(f'ds_read_b64 v[58:59], v48 offset:{F_X1}', tag='x1')
    em.wait_vm('gb')
    em.wait_lg('x1')
    for e in range(2):
        y = f'v{50+e}'; gb = f'v{56+e}'; x1 = f'v{58+e}'
        rnd(em, y, y)
        em(f'v_mul_f32 {y}, {gb}, {y}')
        rnd(em, y, y)
        em(f'v_add_f32 {y}, {x1}, {y}')
    em('v_cvt_pk_bf16_f32 v50, v50, v51')
    em('v_lshlrev_b32 v48, 2, v0')
    em('global_store_dword v48, v50, s[38:39]')
    em.label('L_ffn_end')
    em('s_endpgm')
```

```python
import sys, os
from emit import Em

DEBUG = int(os.environ.get('GEN_DEBUG', '0'))
NS = int(os.environ.get('GEN_NS', '16'))
STAMP = int(os.environ.get('GEN_STAMP', '0'))
stamp_n = [0]
def stamp(em):
    if not STAMP: return
    i = stamp_n[0]; stamp_n[0] += 1
    em(f's_memrealtime s[{64+2*i}:{65+2*i}]')
    em('s_waitcnt lgkmcnt(0)')
    em.lg = []

from gen_common import *
import gen_ffn

def gen_att(em):
    K = 'adaln_att_kernel'
    em.raw(f'.globl {K}\n.p2align 8\n.type {K},@function\n{K}:')
    em('s_cmp_ge_u32 s2, 192')
    em('s_cbranch_scc1 L_att_end')
    em('s_load_dwordx16 s[16:31], s[0:1], 0')
    em('s_load_dwordx8 s[32:39], s[0:1], 64')
    em('s_load_dwordx4 s[40:43], s[0:1], 96')
    em('v_lshrrev_b32 v4, 6, v0')
    em('v_and_b32 v1, 63, v0')
    em('v_lshlrev_b32 v1, 4, v1')
    em('v_readfirstlane_b32 s6, v4')
    em('s_mov_b32 s50, 0x3fb8aa3b')
    em('s_mov_b32 s51, 0x3db504f3')
    em('s_mov_b32 s52, 0x3727c5ac')
    em('s_cmp_lt_u32 s2, 64')
    em('s_cbranch_scc1 L_helper')
    gen_att_role(em)
    em('s_branch L_att_end')
    gen_helper_role(em)
    em.label('L_att_end')
    em('s_endpgm')

def gen_helper_role(em):
    em.label('L_helper')
    em('s_waitcnt lgkmcnt(0)')
    em.lg = []
    hs = [stamp_n[0]]
    stamp(em)
    em('v_bfe_u32 v3, v0, 3, 3')
    em('v_and_b32 v2, 7, v0')
    em('v_mul_u32_u24 v5, 6144, v3')
    em('v_lshlrev_b32 v4, 4, v2')
    em('v_add_u32 v5, v5, v4')
    em('v_lshlrev_b32 v6, 1, v3')
    em('v_mov_b32 v7, 0')
    for it in range(3):
        em(f's_add_u32 s3, s2, {64*it}')
        em('s_and_b32 s4, s3, 3')
        em('s_lshr_b32 s5, s3, 2')
        if it == 0:
            em('s_cmp_lg_u32 s5, 0')
            em('s_cbranch_scc1 L_nozero')
            em('v_cmp_gt_u32 vcc, 512, v0')
            em('s_and_saveexec_b64 s[10:11], vcc')
            em('s_lshl_b32 s7, s4, 11')
            em(f's_add_u32 s7, s7, {WS_ATT}')
            em('s_add_u32 s8, s42, s7')
            em('s_addc_u32 s9, s43, 0')
            em('v_lshlrev_b32 v8, 2, v0')
            em(f'global_store_dword v8, v7, s[8:9] sc1')
            em(f's_add_u32 s8, s8, {WS_Y-WS_ATT}')
            em('s_addc_u32 s9, s9, 0')
            em(f'global_store_dword v8, v7, s[8:9] sc1')
            em('s_mov_b64 exec, s[10:11]')
            em.label('L_nozero')
        em('s_lshl_b32 s7, s4, 10')
        em('s_lshl_b32 s8, s6, 6')
        em('s_add_u32 s7, s7, s8')
        em('s_add_u32 s44, s34, s7')
        em('s_addc_u32 s45, s35, 0')
        for i in range(4):
            em(f'global_load_ushort v{8+i}, v6, s[44:45] offset:{16*i}', tag=f'c{i}')
        em('s_lshl_b32 s7, s5, 7')
        em(f's_mul_i32 s8, s6, {32*6144}')
        em('s_add_u32 s7, s7, s8')
        em('s_add_u32 s46, s36, s7')
        em('s_addc_u32 s47, s37, 0')
        for i in range(4):
            em(f'global_load_dwordx4 v[{32+4*i}:{35+4*i}], v5, s[46:47]', tag=f'wm{i}')
            if i < 3:
                em(f's_add_u32 s46, s46, {8*6144}')
                em('s_addc_u32 s47, s47, 0')
        for i in range(4):
            em.wait_vm(f'c{i}')
            c = f'v{8+i}'
            em(f'v_lshlrev_b32 {c}, 16, {c}')
            em(f'v_mul_f32 v20, s50, {c}')
            em('v_sub_f32 v20, 0, v20')
            em('v_exp_f32 v20, v20')
            em('v_add_f32 v20, 1.0, v20')
            em('v_rcp_f32 v21, v20')
            em(f'v_mul_f32 v22, {c}, v21')
            em(f'v_fma_f32 v23, -v22, v20, {c}')
            em('v_fma_f32 v20, v23, v21, v22')
            em(f'v_cvt_pk_bf16_f32 v{12+i}, v20, 0')
            em(f'v_lshlrev_b32 v{16+i}, 16, v{12+i}')
        if DEBUG and it == 0:
            em('v_lshlrev_b32 v28, 2, v3')
            em('s_lshl_b32 s7, s4, 11')
            em('s_lshl_b32 s8, s6, 7')
            em('s_add_u32 s7, s7, s8')
            em(f's_add_u32 s7, s7, {WS_DBG + 0x40000}')
            em('s_add_u32 s8, s42, s7'); em('s_addc_u32 s9, s43, 0')
            for i in range(4):
                em(f'global_store_dword v28, v{16+i}, s[8:9] offset:{32*i}')
        if it == 0: stamp(em)
        for c in range(8):
            em(f'v_mov_b32 v{20+c}, 0')
        for i in range(4):
            em.wait_vm(f'wm{i}')
            for c in range(4):
                em(f'v_dot2c_f32_bf16 v{20+2*c}, v{12+i}, v{32+4*i+c}')
                em(f'v_dot2c_f32_bf16 v{21+2*c}, v{16+i}, v{32+4*i+c}')
        em('s_lshl_b32 s7, s6, 11')
        em('v_lshlrev_b32 v28, 8, v3')
        em('v_lshlrev_b32 v29, 5, v2')
        em('v_add_u32 v28, v28, v29')
        em('v_add_u32 v28, s7, v28')
        em(f'ds_write_b128 v28, v[20:23] offset:{L_PART}')
        em(f'ds_write_b128 v28, v[24:27] offset:{L_PART+16}')
        em.wait_vm_all()
        em.wait_lg_all()
        em('s_barrier')
        if it == 0: stamp(em)
        em('v_and_b32 v28, 63, v0')
        em('v_lshlrev_b32 v28, 2, v28')
        em('s_lshl_b32 s7, s6, 11')
        em('v_add_u32 v29, s7, v28')
        for e in range(8):
            em(f'ds_read_b32 v{32+e}, v29 offset:{L_PART+256*e}', tag=f'r{e}')
        em.wait_lg('r1')
        em('v_add_f32 v30, v32, v33')
        for e in range(2, 8):
            em.wait_lg(f'r{e}')
            em(f'v_add_f32 v30, v30, v{32+e}')
        em('s_lshl_b32 s7, s6, 8')
        em('v_add_u32 v29, s7, v28')
        em(f'ds_write_b32 v29, v30 offset:{L_ST2}')
        em.wait_lg_all()
        em('s_barrier')
        em('s_cmp_lg_u32 s6, 0')
        em(f's_cbranch_scc1 L_h2skip{it}')
        for e in range(16):
            em(f'ds_read_b32 v{32+e}, v28 offset:{L_ST2+256*e}', tag=f'r{e}')
        em.wait_lg('r1')
        em('v_add_f32 v30, v32, v33')
        for e in range(2, 16):
            em.wait_lg(f'r{e}')
            em(f'v_add_f32 v30, v30, v{32+e}')
        rnd(em, 'v30', 'v30')
        em(f's_mul_i32 s7, s4, 12288')
        em('s_lshl_b32 s8, s5, 8')
        em('s_add_u32 s7, s7, s8')
        em('s_add_u32 s8, s42, s7')
        em('s_addc_u32 s9, s43, 0')
        em(f'global_store_dword v28, v30, s[8:9] offset:{WS_MOD} sc1')
        em.wait_vm_all()
        if it == 0:
            em('s_lshl_b32 s7, s4, 2')
            em('v_mov_b32 v31, s7')
            em('v_mov_b32 v30, 1')
            em('s_mov_b64 exec, 1')
            em('global_atomic_add v31, v30, s[40:41] sc1')
            em('s_mov_b64 exec, -1')
            if STAMP:
                stamp(em)
                em('s_lshl_b32 s7, s2, 6')
                em(f's_add_u32 s7, s7, {WS_DBG + 0xa0000}')
                em('s_add_u32 s8, s42, s7'); em('s_addc_u32 s9, s43, 0')
                em('v_mov_b32 v60, 0')
                for i in range(hs[0], stamp_n[0]):
                    em(f'v_mov_b32 v61, s{64+2*i}')
                    em(f'global_store_dword v60, v61, s[8:9] offset:{4*(i-hs[0])}')
        em.label(f'L_h2skip{it}')
        em.vm = []; em.lg = []
        em('s_barrier')
    em('s_branch L_att_end')

class Stream:
    def __init__(self, em, slot0, ns):
        self.em = em; self.slot0 = slot0; self.ns = ns
        self.desc = []
        self.next = 0
    def slot(self, n):
        b = self.slot0 + 4 * (n % self.ns)
        return b
    def add(self, kind, idx):
        self.desc.append((kind, idx))
    def issue(self):
        em = self.em
        if self.next >= len(self.desc): return
        n = self.next; kind, idx = self.desc[n]
        b = self.slot(n)
        if kind == 'wq':
            em(f'global_load_dwordx4 v[{b}:{b+3}], v15, s[48:49]', tag=('ld', n))
            em('s_add_u32 s48, s48, 32768'); em('s_addc_u32 s49, s49, 0')
        elif kind == 'k':
            em(f'global_load_dwordx4 v[{b}:{b+3}], v1, s[44:45] offset:{(idx%4)*1024} nt', tag=('ld', n))
            if idx % 4 == 3:
                em('s_add_u32 s44, s44, 4096'); em('s_addc_u32 s45, s45, 0')
        elif kind == 'v':
            em(f'global_load_dwordx4 v[{b}:{b+3}], v1, s[46:47] offset:{(idx%4)*1024} nt', tag=('ld', n))
            if idx % 4 == 3:
                em('s_add_u32 s46, s46, 4096'); em('s_addc_u32 s47, s47, 0')
        elif kind == 'wo':
            em(f'global_load_dwordx4 v[{b}:{b+3}], v1, s[54:55] offset:{(idx%4)*1024}', tag=('ld', n))
            if idx % 4 == 3:
                em('s_add_u32 s54, s54, 4096'); em('s_addc_u32 s55, s55, 0')
        self.next += 1
    def wait(self, n):
        self.em.wait_vm(('ld', n))

BINV = [0, 2, 1, 3]

def gen_att_role(em):
    SL0 = 56
    st = Stream(em, SL0, NS)
    for i in range(8): st.add('wq', i)
    for i in range(64): st.add('k', i)
    for i in range(64): st.add('v', i)
    for i in range(8): st.add('wo', i)
    NWQ, NK = 8, 64
    em('s_sub_u32 s3, s2, 64')
    em('s_and_b32 s7, s3, 7')
    em('s_bfe_u32 s8, s3, 0x20003')
    em('s_lshl_b32 s8, s8, 3')
    em('s_add_u32 s5, s7, s8')
    em('s_lshr_b32 s4, s3, 5')
    em('v_and_b32 v2, 15, v0')
    em('v_bfe_u32 v3, v0, 4, 2')
    em('s_waitcnt lgkmcnt(0)')
    stamp(em)
    em('s_lshl_b32 s7, s4, 5')
    em('s_add_u32 s7, s7, s5')
    em('s_lshl_b32 s8, s7, 20')
    em('s_lshl_b32 s9, s6, 16')
    em('s_add_u32 s8, s8, s9')
    em('s_add_u32 s44, s18, s8'); em('s_addc_u32 s45, s19, 0')
    em('s_add_u32 s46, s20, s8'); em('s_addc_u32 s47, s21, 0')
    em('s_lshl_b32 s8, s5, 8')
    em('s_lshl_b32 s9, s6, 18')
    em('s_add_u32 s8, s8, s9')
    em('s_add_u32 s48, s22, s8'); em('s_addc_u32 s49, s23, 0')
    em('v_lshlrev_b32 v15, 13, v3')
    em('v_lshlrev_b32 v4, 4, v2')
    em('v_add_u32 v15, v15, v4')
    em('s_lshl_b32 s8, s5, 17')
    em('s_lshl_b32 s9, s6, 13')
    em('s_add_u32 s8, s8, s9')
    em('s_add_u32 s54, s24, s8'); em('s_addc_u32 s55, s25, 0')
    em('s_lshl_b32 s7, s4, 10')
    em('s_add_u32 s10, s16, s7'); em('s_addc_u32 s11, s17, 0')
    em('global_load_dwordx4 v[8:11], v1, s[10:11]', tag='xrow')
    em('v_and_b32 v4, 12, v2')
    em('v_add_u32 v4, v4, v3')
    em('s_lshl_b32 s7, s6, 5')
    em('v_add_u32 v4, s7, v4')
    em('v_lshlrev_b32 v5, 1, v4')
    em('global_load_ushort v12, v5, s[10:11]', tag='xg0')
    em('global_load_ushort v13, v5, s[10:11] offset:32', tag='xg1')
    em('v_lshlrev_b32 v6, 2, v4')
    for _ in range(NS): st.issue()
    em.wait_vm('xrow')
    xs = ['v28', 'v29', 'v30', 'v31', 'v32', 'v33', 'v34', 'v35']
    for c in range(4):
        em(f'v_lshlrev_b32 {xs[2*c]}, 16, v{8+c}')
        em(f'v_and_b32 {xs[2*c+1]}, 0xffff0000, v{8+c}')
    em('v_add_f32 v7, v28, v29')
    for c in range(2, 8): em(f'v_add_f32 v7, v7, {xs[c]}')
    wave_allreduce(em, 'v_add_f32', 'v7', 'v14')
    em('v_mul_f32 v7, 0x3b000000, v7')
    em(f'v_sub_f32 v14, {xs[0]}, v7')
    em('v_mul_f32 v36, v14, v14')
    for c in range(1, 8):
        em(f'v_sub_f32 v14, {xs[c]}, v7')
        em('v_fmac_f32 v36, v14, v14')
    wave_allreduce(em, 'v_add_f32', 'v36', 'v14')
    em('v_mul_f32 v36, 0x3b000000, v36')
    rnd(em, 'v7', 'v7')
    rnd(em, 'v36', 'v36')
    em('v_add_f32 v36, s52, v36')
    rnd(em, 'v36', 'v36')
    em('v_sqrt_f32 v36, v36')
    rnd(em, 'v36', 'v36')
    em('v_rcp_f32 v37, v36')
    for r, xv in enumerate(('v12', 'v13')):
        em.wait_vm(f'xg{r}')
        em(f'v_lshlrev_b32 {xv}, 16, {xv}')
        em(f'v_sub_f32 {xv}, {xv}, v7')
        rnd(em, xv, xv)
        em(f'v_mul_f32 v14, {xv}, v37')
        em(f'v_fma_f32 v38, -v14, v36, {xv}')
        em(f'v_fma_f32 v14, v38, v37, v14')
        rnd(em, xv, 'v14')
    em('s_cmp_lg_u32 s6, 0')
    em('s_cbranch_scc1 L_poll_done')
    em('s_lshl_b32 s7, s4, 2')
    em('v_mov_b32 v14, s7')
    em('s_mov_b32 s8, 0')
    em('s_waitcnt vmcnt(0)')
    em.label('L_poll')
    em('global_load_dword v38, v14, s[40:41] sc1')
    em('s_waitcnt vmcnt(0)')
    em('v_readfirstlane_b32 s7, v38')
    em('s_add_u32 s8, s8, 1')
    em('s_cmp_ge_u32 s8, 400000')
    em('s_cbranch_scc1 L_poll_done')
    em('s_cmp_ge_u32 s7, 16')
    em('s_cbranch_scc1 L_poll_done')
    em('s_sleep 1')
    em('s_branch L_poll')
    em.label('L_poll_done')
    em('s_barrier')
    stamp(em)
    em('s_mul_i32 s7, s4, 12288')
    em('s_add_u32 s8, s42, s7'); em('s_addc_u32 s9, s43, 0')
    em(f'global_load_dword v28, v6, s[8:9] offset:{WS_MOD} sc1', tag='sa0')
    em(f'global_load_dword v29, v6, s[8:9] offset:{WS_MOD+2048} sc1', tag='ca0')
    em(f'global_load_dword v30, v6, s[8:9] offset:{WS_MOD+64} sc1', tag='sa1')
    em(f'global_load_dword v31, v6, s[8:9] offset:{WS_MOD+2048+64} sc1', tag='ca1')
    for r, (nv, sa, ca) in enumerate((('v12', 'v28', 'v29'), ('v13', 'v30', 'v31'))):
        em.wait_vm(f'ca{r}')
        em(f'v_add_f32 {ca}, 1.0, {ca}')
        rnd(em, ca, ca)
        em(f'v_mul_f32 {ca}, {nv}, {ca}')
        rnd(em, ca, ca)
        em(f'v_add_f32 {ca}, {ca}, {sa}')
        em(f'v_cvt_pk_bf16_f32 v{36+r}, {ca}, 0')
        em(f'v_lshlrev_b32 v{38+r}, 16, v{36+r}')
    for c in range(8): em(f'v_mov_b32 v{20+c}, 0')
    for i in range(NWQ):
        st.wait(i)
        b = st.slot(i)
        for c in range(4):
            em(f'v_dot2c_f32_bf16_dpp v{20+2*c}, v{36+(i>>2)}, v{b+c} row_newbcast:{4*(i&3)} {DPPM}')
            em(f'v_dot2c_f32_bf16_dpp v{21+2*c}, v{38+(i>>2)}, v{b+c} row_newbcast:{4*(i&3)} {DPPM}')
        st.issue()
    reduce128(em, 'q')
    stamp(em)
    if DEBUG:
        em('v_cmp_gt_u32 vcc, 128, v0')
        em('s_and_saveexec_b64 s[12:13], vcc')
        em('v_lshlrev_b32 v28, 1, v0')
        em(f'ds_read_u16 v29, v28 offset:{L_Q}')
        em.wait_lg_all()
        em('v_lshlrev_b32 v29, 16, v29')
        em('s_lshl_b32 s7, s4, 5'); em('s_add_u32 s7, s7, s5'); em('s_lshl_b32 s7, s7, 9')
        em(f's_add_u32 s8, s42, s7'); em('s_addc_u32 s9, s43, 0')
        em('v_lshlrev_b32 v28, 2, v0')
        em(f's_add_u32 s8, s8, {WS_DBG}'); em('s_addc_u32 s9, s9, 0')
        em(f'global_store_dword v28, v29, s[8:9]')
        em('s_mov_b64 exec, s[12:13]')
    T = [['v28', 'v29', 'v30', 'v31'], ['v32', 'v33', 'v34', 'v35']]
    S = [f'v{36+r}' for r in range(16)]
    def merges(r):
        t = T[r & 1]
        return [
            f'v_add_f32_dpp {t[0]}, {t[0]}, {t[0]} row_ror:8 {DPPM}',
            f'v_add_f32_dpp {t[2]}, {t[2]}, {t[2]} row_ror:8 {DPPM}',
            f'v_add_f32_dpp {t[0]}, {t[1]}, {t[1]} row_ror:8 row_mask:0xf bank_mask:0xc',
            f'v_add_f32_dpp {t[2]}, {t[3]}, {t[3]} row_ror:8 row_mask:0xf bank_mask:0xc',
            f'v_add_f32_dpp {t[0]}, {t[0]}, {t[0]} row_ror:12 {DPPM}',
            f'v_add_f32_dpp {t[0]}, {t[2]}, {t[2]} row_ror:4 row_mask:0xf bank_mask:0xa',
            f'v_add_f32_dpp {t[0]}, {t[0]}, {t[0]} quad_perm:[2,3,0,1] {DPPM}',
            f'v_add_f32_dpp {S[r]}, {t[0]}, {t[0]} quad_perm:[1,0,3,2] {DPPM} bound_ctrl:0',
        ]
    pend = []
    for r in range(16):
        for e in range(4):
            i = 4 * r + e
            n = NWQ + i
            st.wait(n)
            b = st.slot(n)
            t = T[r & 1][e]
            em(f'v_dot2_f32_bf16 {t}, v{b}, v16, 0')
            for c in range(1, 4):
                em(f'v_dot2_f32_bf16 {t}, v{b+c}, v{16+c}, {t}')
            st.issue()
            for _ in range(2):
                if pend: em(pend.pop(0))
        assert not pend
        pend = merges(r)
    for m in pend: em(m)
    stamp(em)
    for r in range(16):
        rnd(em, S[r], S[r])
        em(f'v_mul_f32 {S[r]}, s51, {S[r]}')
        rnd(em, S[r], S[r])
    em(f'v_max3_f32 v7, {S[0]}, {S[1]}, {S[2]}')
    for r in range(3, 15, 2):
        em(f'v_max3_f32 v7, v7, {S[r]}, {S[r+1]}')
    em(f'v_max_f32 v7, v7, {S[15]}')
    wave_allreduce(em, 'v_max_f32', 'v7', 'v14', levels=(8, 4))
    em('v_mov_b32 v12, 0')
    for r in range(16):
        em(f'v_sub_f32 v14, {S[r]}, v7')
        em('v_mul_f32 v14, s50, v14')
        em('v_exp_f32 v14, v14')
        em('v_add_f32 v12, v12, v14')
    wave_allreduce(em, 'v_add_f32', 'v12', 'v14', levels=(8, 4))
    em('v_mov_b32 v8, v7'); em('v_mov_b32 v9, v12')
    em('s_lshl_b32 s7, s6, 3')
    em('v_mov_b32 v14, s7')
    em('s_mov_b64 exec, 1')
    em(f'ds_write_b64 v14, v[8:9] offset:{L_STAT}')
    em('s_mov_b64 exec, -1')
    em.wait_lg_all()
    em('s_barrier')
    em('v_lshlrev_b32 v14, 3, v2')
    em(f'ds_read_b64 v[8:9], v14 offset:{L_STAT}', tag='st')
    em.wait_lg('st')
    em('v_mov_b32 v7, v8')
    row_allreduce(em, 'v_max_f32', 'v7')
    em('v_sub_f32 v14, v8, v7')
    em('v_mul_f32 v14, s50, v14')
    em('v_exp_f32 v14, v14')
    em('v_mul_f32 v12, v9, v14')
    row_allreduce(em, 'v_add_f32', 'v12')
    em('v_rcp_f32 v12, v12')
    for r in range(16):
        em(f'v_sub_f32 v14, {S[r]}, v7')
        em('v_mul_f32 v14, s50, v14')
        em('v_exp_f32 v14, v14')
        em('v_mul_f32 v14, v14, v12')
        em(f'v_cvt_pk_bf16_f32 {S[r]}, v14, 0')
    stamp(em)
    for c in range(8): em(f'v_mov_b32 v{20+c}, 0')
    for r in range(16):
        hi = f'v{52 + (r & 1)}'
        em(f'v_lshlrev_b32 {hi}, 16, {S[r]}')
        for e in range(4):
            i = 4 * r + e
            n = NWQ + NK + i
            st.wait(n)
            b = st.slot(n)
            bc = 4 * BINV[e]
            for c in range(4):
                em(f'v_dot2c_f32_bf16_dpp v{20+2*c}, {S[r]}, v{b+c} row_newbcast:{bc} {DPPM}')
                em(f'v_dot2c_f32_bf16_dpp v{21+2*c}, {hi}, v{b+c} row_newbcast:{bc} {DPPM}')
            st.issue()
    stamp(em)
    reduce128(em, 'o')
    stamp(em)
    if DEBUG:
        em('v_cmp_gt_u32 vcc, 128, v0')
        em('s_and_saveexec_b64 s[12:13], vcc')
        em('v_lshlrev_b32 v28, 2, v0')
        em(f'ds_read_b32 v29, v28 offset:{L_OHI}')
        em.wait_lg_all()
        em('s_lshl_b32 s7, s4, 5'); em('s_add_u32 s7, s7, s5'); em('s_lshl_b32 s7, s7, 9')
        em(f's_add_u32 s8, s42, s7'); em('s_addc_u32 s9, s43, 0')
        em(f's_add_u32 s8, s8, {WS_DBG + 0x10000}'); em('s_addc_u32 s9, s9, 0')
        em(f'global_store_dword v28, v29, s[8:9]')
        em('s_mov_b64 exec, s[12:13]')
    em('s_lshl_b32 s7, s6, 5')
    em('v_mov_b32 v14, s7')
    em(f'ds_read_b128 v[28:31], v14 offset:{L_OLO}', tag='ol0')
    em(f'ds_read_b128 v[32:35], v14 offset:{L_OLO+16}', tag='ol1')
    em(f'ds_read_b128 v[36:39], v14 offset:{L_OHI}', tag='oh0')
    em(f'ds_read_b128 v[40:43], v14 offset:{L_OHI+16}', tag='oh1')
    for c in range(8): em(f'v_mov_b32 v{20+c}, 0')
    em.wait_lg('oh1')
    for e in range(8):
        n = NWQ + NK + 64 + e
        st.wait(n)
        b = st.slot(n)
        for c in range(4):
            em(f'v_dot2c_f32_bf16 v{20+2*c}, v{28+e}, v{b+c}')
            em(f'v_dot2c_f32_bf16 v{21+2*c}, v{36+e}, v{b+c}')
    em('s_lshl_b32 s7, s6, 11')
    em('v_lshlrev_b32 v14, 1, v1')
    em('v_add_u32 v14, s7, v14')
    em(f'ds_write_b128 v14, v[20:23] offset:{L_PART}')
    em(f'ds_write_b128 v14, v[24:27] offset:{L_PART+16}')
    em.wait_lg_all()
    em('s_barrier')
    em('s_cmp_ge_u32 s6, 8')
    em('s_cbranch_scc1 L_att_role_end')
    em('v_lshlrev_b32 v14, 2, v0')
    for e in range(16):
        em(f'ds_read_b32 v{28+e}, v14 offset:{L_PART+2048*e}', tag=f'r{e}')
    em.wait_lg('r1')
    em('v_add_f32 v12, v28, v29')
    for e in range(2, 16):
        em.wait_lg(f'r{e}')
        em(f'v_add_f32 v12, v12, v{28+e}')
    em('s_lshl_b32 s7, s4, 11')
    em(f's_add_u32 s7, s7, {WS_ATT}')
    em('s_add_u32 s8, s42, s7'); em('s_addc_u32 s9, s43, 0')
    em(f'global_atomic_add_f32 v14, v12, s[8:9]')
    em.label('L_att_role_end')
    if STAMP:
        stamp(em)
        em('s_cmp_lg_u32 s6, 0')
        em('s_cbranch_scc1 L_stamp_done')
        em('s_sub_u32 s7, s2, 64')
        em('s_lshl_b32 s7, s7, 6')
        em(f's_add_u32 s7, s7, {WS_DBG + 0x80000}')
        em('s_add_u32 s8, s42, s7'); em('s_addc_u32 s9, s43, 0')
        em('v_mov_b32 v4, 0')
        for i in range(stamp_n[0]):
            em(f'v_mov_b32 v5, s{64+2*i}')
            em(f'global_store_dword v4, v5, s[8:9] offset:{4*i}')
        em.label('L_stamp_done')

def reduce128(em, what):
    em('s_lshl_b32 s7, s6, 11')
    em('v_lshlrev_b32 v14, 9, v3')
    em('v_lshlrev_b32 v13, 5, v2')
    em('v_add_u32 v14, v14, v13')
    em('v_add_u32 v14, s7, v14')
    em(f'ds_write_b128 v14, v[20:23] offset:{L_PART}')
    em(f'ds_write_b128 v14, v[24:27] offset:{L_PART+16}')
    em.wait_lg_all()
    em('s_barrier')
    em('v_and_b32 v13, 127, v0')
    em('v_lshlrev_b32 v13, 2, v13')
    em('v_lshrrev_b32 v14, 7, v0')
    em('v_lshlrev_b32 v12, 12, v14')
    em('v_add_u32 v12, v12, v13')
    for e in range(8):
        em(f'ds_read_b32 v{28+e}, v12 offset:{L_PART+512*e}', tag=f'r{e}')
    em.wait_lg('r1')
    em('v_add_f32 v8, v28, v29')
    for e in range(2, 8):
        em.wait_lg(f'r{e}')
        em(f'v_add_f32 v8, v8, v{28+e}')
    em('v_lshlrev_b32 v12, 9, v14')
    em('v_add_u32 v12, v12, v13')
    em(f'ds_write_b32 v12, v8 offset:{L_ST2}')
    em.wait_lg_all()
    em('s_barrier')
    em('s_cmp_ge_u32 s6, 2')
    em(f's_cbranch_scc1 L_red_skip_{what}')
    for e in range(8):
        em(f'ds_read_b32 v{28+e}, v13 offset:{L_ST2+512*e}', tag=f'r{e}')
    em.wait_lg('r1')
    em('v_add_f32 v8, v28, v29')
    for e in range(2, 8):
        em.wait_lg(f'r{e}')
        em(f'v_add_f32 v8, v8, v{28+e}')
    em('v_cvt_pk_bf16_f32 v8, v8, 0')
    if what == 'q':
        em('v_lshrrev_b32 v12, 1, v13')
        em(f'ds_write_b16 v12, v8 offset:{L_Q}')
    else:
        em(f'ds_write_b32 v13, v8 offset:{L_OLO}')
        em('v_lshlrev_b32 v8, 16, v8')
        em(f'ds_write_b32 v13, v8 offset:{L_OHI}')
    em.label(f'L_red_skip_{what}')
    em.lg = []
    em('s_waitcnt lgkmcnt(0)')
    em('s_barrier')
    if what == 'q':
        em('v_lshlrev_b32 v12, 4, v2')
        em(f'ds_read_b128 v[16:19], v12 offset:{L_Q}', tag='qq')
        em.wait_lg('qq')

def kdesc(name, vgpr, sgpr, lds):
    return f'''.amdhsa_kernel {name}
  .amdhsa_next_free_vgpr {vgpr}
  .amdhsa_next_free_sgpr {sgpr}
  .amdhsa_accum_offset {(vgpr+3)//4*4}
  .amdhsa_group_segment_fixed_size 0
  .amdhsa_kernarg_size 112
  .amdhsa_user_sgpr_count 2
  .amdhsa_user_sgpr_kernarg_segment_ptr 1
  .amdhsa_system_sgpr_workgroup_id_x 1
.end_amdhsa_kernel
'''

def main():
    out = sys.argv[1]
    em = Em()
    hdr = [f'; @launch kernel=adaln_att_kernel grid=(192,1,1) block=(1024,1,1) lds={LDS_BYTES}',
           f'; @launch kernel=adaln_ffn_kernel grid=({gen_ffn.NF},1,1) block=(1024,1,1) lds={gen_ffn.F_LDS}',
           '.amdgcn_target "amdgcn-amd-amdhsa--gfx950"', '.text']
    gen_att(em)
    gen_ffn.gen_ffn(em, DEBUG)
    txt = '\n'.join(hdr) + '\n' + em.text()
    txt += '.section .rodata,"a"\n.p2align 6\n' + kdesc('adaln_att_kernel', 56 + 4 * NS, 96, LDS_BYTES) + kdesc('adaln_ffn_kernel', 96, 96, gen_ffn.F_LDS)
    open(out, 'w').write(txt)

main()
```
